```python
import torch

def _softmax(x, axis=-1):
    return torch.softmax(x, dim=axis)
def _gelu(x):
    return torch.nn.functional.gelu(x, approximate="tanh")
def _silu(x):
    return torch.nn.functional.silu(x)
def _sigmoid(x):
    return torch.sigmoid(x)
def _layernorm(x, axis=-1, eps=1e-5):
    m = x.mean(dim=axis, keepdim=True)
    v = x.var(dim=axis, keepdim=True, unbiased=False)
    return (x - m) / torch.sqrt(v + eps)
def _scatter_add(tgt, idx, src, axis=0):
    return tgt.clone().index_add_(axis, idx, src)
def _segment_sum(src, seg, n):
    out = torch.zeros((n,) + src.shape[1:], dtype=src.dtype)
    return out.index_add_(0, seg, src)
def _pad(x, pw):
    flat = tuple(v for pair in reversed(pw) for v in pair)
    return torch.nn.functional.pad(x, flat)

kernel_name = 'parallel_sum__ssm_conv_h3__dense_activation_relu__prompt'

def setup_inputs():

    _w = (lambda a: (lambda t: t.to(torch.bfloat16) if t.is_floating_point() else t)(torch.as_tensor(a)))
    def _A_setup():
        B, S, D = 1, 2048, 576
        ks = 4
        return {
            "q": _w((lambda *s: torch.randn(*s, dtype=torch.bfloat16) * 0.05)(B, S, D)),
            "k": _w((lambda *s: torch.randn(*s, dtype=torch.bfloat16) * 0.8)(B, S, D)),
            "v": _w((lambda *s: torch.randn(*s, dtype=torch.bfloat16) * 0.8)(B, S, D)),
            "shift_k": _w((lambda *s: torch.randn(*s, dtype=torch.bfloat16) * 0.8)(D, ks) * 0.5),
            "ssm_k": _w((lambda *s: torch.randn(*s, dtype=torch.bfloat16) * 0.8)(D, S) * (1.0 / S ** 0.5)),
            "ssm_D": _w((lambda *s: torch.randn(*s, dtype=torch.bfloat16) * 0.8)(D)),
        }
    _A_in = _A_setup()

    def _B_setup():
        B, S, D, Dff = 1, 2048, 576, 4608
        return {
            "x": _w((lambda *s: torch.randn(*s, dtype=torch.bfloat16) * 0.05)(B, S, D)),
            "w1": _w((lambda *s: torch.randn(*s, dtype=torch.bfloat16) * 0.05)(D, Dff)),
            "w2": _w((lambda *s: torch.randn(*s, dtype=torch.bfloat16) * 0.05)(Dff, D)),
        }
    _B_in = _B_setup()

    return {
        "A_q": _A_in["q"],
        "A_k": _A_in["k"],
        "A_v": _A_in["v"],
        "A_shift_k": _A_in["shift_k"],
        "A_ssm_k": _A_in["ssm_k"],
        "A_ssm_D": _A_in["ssm_D"],
        "B_x": _B_in["x"],
        "B_w1": _B_in["w1"],
        "B_w2": _B_in["w2"],
    }

def reference(A_q, A_k, A_v, A_shift_k, A_ssm_k, A_ssm_D, B_x, B_w1, B_w2):
    def _A_ref(q, k, v, shift_k, ssm_k, ssm_D):
        B, S, D = q.shape
        ks = shift_k.shape[-1]
        k_pad = _pad(k, ((0, 0), (ks - 1, 0), (0, 0)))
        k_shift = torch.zeros_like(k)
        for t in range(ks):
            k_shift = k_shift + k_pad[:, t:t + S, :] * shift_k[:, ks - 1 - t][None, None, :]
        kv = k_shift * v
        L = 2 * S
        kv_pad = _pad(kv, ((0, 0), (0, S), (0, 0)))
        kf_pad = _pad(ssm_k, ((0, 0), (0, S)))
        kv_f = (lambda x, axes=(-2,-1): torch.fft.rfft2(x.float(), dim=axes))(kv_pad[:, None, :, :], axes=(1, 2))
        kf_f = (lambda x, axes=(-2,-1): torch.fft.rfft2(x.float(), dim=axes))(kf_pad[:, None, :], axes=(1, 2))
        kf_f = (lambda x, *d: x.permute(*d))(kf_f, 1, 2, 0)
        y_f = kv_f * kf_f[None, :, :, :]
        y = (lambda x, s, axes=(-2,-1): torch.fft.irfft2(x, s=s, dim=axes).to(torch.bfloat16))(y_f, (1, L), axes=(1, 2))[:, 0, :S, :]
        y = y + kv * ssm_D[None, None, :]
        return q * y

    def _B_ref(x, w1, w2):
        h = torch.einsum("bsd,df->bsf", x, w1)
        zero = torch.zeros_like(h)
        h = torch.maximum(h, zero)
        return torch.einsum("bsf,fd->bsd", h, w2)

    x = A_q
    xn = _layernorm(x, axis=-1)
    return x + _A_ref(xn, A_k, A_v, A_shift_k, A_ssm_k, A_ssm_D) + _B_ref(xn, B_w1, B_w2)
```

```python
import re


class E:
    def __init__(self):
        self.L = []
        self.q = []

    def __call__(self, s):
        for ln in s.split("\n"):
            ln = ln.strip()
            if ln:
                self.L.append(ln)

    def label(self, name):
        self.L.append(name + ":")

    def comment(self, s):
        self.L.append("; " + s)

    def ds(self, ins, tag):
        self.L.append(ins)
        self.q.append(tag)
        assert len(self.q) <= 40

    def need(self, *tags):
        last = -1
        for i, t in enumerate(self.q):
            if t in tags:
                last = i
        if last < 0:
            return
        n = len(self.q) - 1 - last
        n = min(n, 15)
        self.L.append(f"s_waitcnt lgkmcnt({n})")
        self.q = self.q[len(self.q) - n:] if n else []

    def drain(self):
        self.L.append("s_waitcnt lgkmcnt(0)")
        self.q = []

    def text(self):
        out = []
        for ln in self.L:
            if ln.endswith(":") or ln.startswith(";") or ln.startswith("."):
                out.append(ln)
            else:
                out.append("    " + ln)
        return "\n".join(out) + "\n"


def vr(a, n=1):
    return f"v{a}" if n == 1 else f"v[{a}:{a+n-1}]"


def sr(a, n=1):
    return f"s{a}" if n == 1 else f"s[{a}:{a+n-1}]"


def srd(e, d, lo, nbytes, off=0):
    if off:
        e(f"s_add_u32 s{d}, s{lo}, {off}")
        e(f"s_addc_u32 s{d+1}, s{lo+1}, 0")
    else:
        e(f"s_mov_b32 s{d}, s{lo}")
        e(f"s_mov_b32 s{d+1}, s{lo+1}")
    e(f"s_mov_b32 s{d+2}, {nbytes}")
    e(f"s_mov_b32 s{d+3}, 0x20000")


_REG = re.compile(r"\bv\[(\d+):(\d+)\]|\bv(\d+)\b")
_SREG = re.compile(r"\bs\[(\d+):(\d+)\]|\bs(\d+)\b|\b(vcc|m0|exec)\b")


def _regs(op):
    out = set()
    for m in _REG.finditer(op):
        if m.group(3) is not None:
            out.add(int(m.group(3)))
        else:
            out.update(range(int(m.group(1)), int(m.group(2)) + 1))
    return out


def _sregs(op):
    out = set()
    for m in _SREG.finditer(op):
        if m.group(4):
            out.add(m.group(4))
        elif m.group(3) is not None:
            out.add(int(m.group(3)))
        else:
            out.update(range(int(m.group(1)), int(m.group(2)) + 1))
    return out


def _split(ln):
    p = ln.split(None, 1)
    if len(p) == 1:
        return p[0], []
    ops = [x.strip() for x in re.split(r",(?![^\[]*\])", p[1])]
    return p[0], ops


TRANS = ("v_rcp", "v_rsq", "v_sqrt", "v_exp", "v_log", "v_sin", "v_cos")


def classify(ln):
    mn, ops = _split(ln)
    d = dict(mn=mn, kind="other", vw=set(), vr=set(), sw=set(), sr=set(), c=set(), ab=set(), ws=1, data=set())
    if mn.startswith("s_nop"):
        d["ws"] = int(ops[0], 0) + 1
        return d
    if mn.startswith("v_mfma"):
        d["kind"] = "mfma"
        d["vw"] = _regs(ops[0])
        d["ab"] = _regs(ops[1]) | _regs(ops[2])
        d["c"] = _regs(ops[3])
        d["vr"] = d["ab"] | d["c"]
        d["passes"] = 8 if "32x32" in mn else 4
        return d
    if mn.startswith("v_"):
        d["kind"] = "valu"
        if mn.startswith("v_cmp"):
            d["sw"] = _sregs(ops[0])
            for o in ops[1:]:
                d["vr"] |= _regs(o)
                d["sr"] |= _sregs(o)
        elif mn.startswith("v_readfirstlane") or mn.startswith("v_readlane"):
            d["sw"] = _sregs(ops[0])
            d["vr"] = _regs(ops[1])
        elif mn.startswith("v_permlane"):
            d["vw"] = _regs(ops[0]) | _regs(ops[1])
            d["vr"] = set(d["vw"])
        else:
            d["vw"] = _regs(ops[0])
            for o in ops[1:]:
                d["vr"] |= _regs(o)
                d["sr"] |= _sregs(o)
            if mn.startswith("v_fmac") or mn.startswith("v_dot2c"):
                d["vr"] |= d["vw"]
            if "_co_" in mn:
                d["sw"] = _sregs(ops[1])
        d["dpp"] = "dpp" in mn or "quad_perm" in ln or "row_" in ln
        d["trans"] = mn.startswith(TRANS)
        return d
    if mn.startswith("ds_"):
        d["kind"] = "ds"
        if "read" in mn or "bpermute" in mn or "swizzle" in mn:
            d["vw"] = _regs(ops[0])
            for o in ops[1:]:
                d["vr"] |= _regs(o)
        else:
            for o in ops:
                d["vr"] |= _regs(o)
        return d
    if mn.startswith("buffer_") or mn.startswith("global_"):
        d["kind"] = "vmem"
        lds = bool(re.search(r"\blds\b", ln))
        d["lds"] = lds
        if "load" in mn and not lds:
            d["vw"] = _regs(ops[0])
            rest = ops[1:]
        else:
            rest = ops
        for o in rest:
            d["vr"] |= _regs(o)
            d["sr"] |= _sregs(o)
        if "store" in mn and ("x3" in mn or "x4" in mn):
            d["data"] = _regs(ops[0]) if mn.startswith("buffer_") else _regs(ops[1])
        return d
    if mn.startswith("s_"):
        d["kind"] = "salu"
        if ops and not mn.startswith(("s_cmp", "s_cbranch", "s_branch", "s_waitcnt", "s_barrier", "s_setprio", "s_sleep")):
            d["sw"] = _sregs(ops[0])
            for o in ops[1:]:
                d["sr"] |= _sregs(o)
        return d
    return d


def need_ws(p, c):
    n = 0
    if p["kind"] == "mfma":
        ps = p["passes"]
        if c["kind"] == "mfma":
            if p["vw"] & c["ab"]:
                n = max(n, 8 if ps == 4 else 12)
            if p["vw"] & c["c"] and not (p["vw"] == c["c"] and ps == c["passes"]):
                n = max(n, 6 if ps == 4 else 10)
            if p["vw"] & c["vw"] and not c["c"] & p["vw"]:
                n = max(n, 8 if ps == 4 else 12)
        elif c["kind"] in ("valu", "ds", "vmem"):
            if p["vw"] & (c["vr"] | c["vw"]):
                n = max(n, 8 if ps == 4 else 12)
            if c["kind"] == "valu" and p["c"] & c["vw"]:
                n = max(n, 3 if ps == 4 else 7)
    if p["kind"] == "valu":
        if c["kind"] == "mfma" and p["vw"] & c["vr"]:
            n = max(n, 2)
        if c["kind"] == "valu":
            if c.get("dpp") and p["vw"] & c["vr"]:
                n = max(n, 2)
            if c["mn"].startswith("v_permlane") and p["vw"] & c["vr"]:
                n = max(n, 2)
            if c["mn"].startswith(("v_readfirstlane", "v_readlane")) and p["vw"] & c["vr"]:
                n = max(n, 1)
            if p.get("trans") and not c.get("trans") and p["vw"] & c["vr"]:
                n = max(n, 1)
            if p["sw"] & c["sr"]:
                n = max(n, 2)
            if "vcc" in p["sw"] and c["mn"].startswith(("v_cndmask", "v_addc", "v_subb")):
                n = max(n, 2)
        if c["kind"] == "vmem" and p["sw"] & c["sr"]:
            n = max(n, 5)
        if c["kind"] == "salu" and p["sw"] & c["sr"]:
            n = max(n, 1)
    if p["kind"] == "vmem" and p["data"] and p["data"] & c["vw"]:
        n = max(n, 2)
    if p["kind"] == "salu" and "m0" in p["sw"] and c["kind"] == "vmem" and c.get("lds"):
        n = max(n, 1)
    return n


def check_hazards(lines):
    ins = []
    labels = {}
    for ln in lines:
        ln = ln.split(";")[0].strip()
        if not ln or ln.startswith("."):
            continue
        if ln.endswith(":"):
            labels[ln[:-1]] = len(ins)
            continue
        ins.append(ln)
    cl = [classify(x) for x in ins]
    bad = []

    def succ(i):
        mn, ops = _split(ins[i])
        if mn == "s_endpgm":
            return []
        if mn == "s_branch":
            return [labels[ops[0]]]
        if mn.startswith("s_cbranch"):
            return [i + 1, labels[ops[0]]]
        return [i + 1]

    for i, p in enumerate(cl):
        if p["kind"] not in ("mfma", "valu", "vmem", "salu"):
            continue
        stack = [(j, 0) for j in succ(i)]
        seen = set()
        while stack:
            j, dist = stack.pop()
            if j >= len(ins) or dist >= 12 or (j, dist) in seen:
                continue
            seen.add((j, dist))
            n = need_ws(p, cl[j])
            if n > dist:
                bad.append((ins[i], ins[j], dist, n))
            for k in succ(j):
                stack.append((k, dist + cl[j]["ws"]))
    return bad
```

```python
import sys, os
sys.path.insert(0, os.path.dirname(os.path.abspath(__file__)))
from emit import E, vr, sr, srd, check_hazards

NAME = "parallel_sum__ssm_conv_h3__dense_activation_relu__prompt"
XB = 2048 * 576 * 2
WB = 576 * 4608 * 2
NSL = 12
P_OFF = 0
Y_OFF = NSL * XB
CS_OFF = Y_OFF + XB
CS_SZ = 288 * 128
ST_SZ = 2048 * 8
TS_OFF = CS_OFF + CS_SZ + ST_SZ

XBASE = 0
WBASE = 32768
WSLOT = 24576
MISC = WBASE + 5 * WSLOT
LDS_BYTES = 163840
UBASE = 0
UROW = 4608
KBASE = 12 * UROW

OPT = dict(stamp=0)
STAMP_GROUPS = {
    "prep": (0, lambda i: i < 16, slice(0, 8)),
    "ffn_c": (1, lambda i: 48 <= i < 240, slice(0, 4)),
    "ffn_a": (1, lambda i: 48 <= i < 240, slice(4, 8)),
    "conv_m": (1, lambda i: i < 48, slice(0, 4)),
    "conv_a": (1, lambda i: i < 48, slice(4, 8)),
    "reduce": (2, lambda i: i < 576, slice(0, 4)),
}

Q, KK, VV, SH, SK, DD, W1, W2, OUT, DBG, WS = 4, 6, 8, 10, 12, 14, 18, 20, 22, 24, 26


def load_args(e):
    e("s_load_dwordx16 s[4:19], s[0:1], 0")
    e("s_load_dwordx8 s[20:27], s[0:1], 64")


def wave_id(e, s):
    e("v_lshrrev_b32 v1, 6, v0")
    e("v_and_b32 v0, 63, v0")
    e(f"v_readfirstlane_b32 s{s}, v1")


def stamp_begin(e):
    if OPT["stamp"]:
        e("s_memrealtime s[96:97]")


def stamp_mid(e, k):
    if OPT["stamp"]:
        e(f"s_memrealtime s[{88+2*k}:{89+2*k}]")


def stamp_end(e, kern, wreg, tag):
    if not OPT["stamp"]:
        return
    e("s_waitcnt vmcnt(0) lgkmcnt(0)")
    e("s_memrealtime s[98:99]")
    e("s_waitcnt lgkmcnt(0)")
    e("v_mov_b32 v2, s96\nv_mov_b32 v3, s98\nv_mov_b32 v4, s88\nv_mov_b32 v5, s90\nv_mov_b32 v6, s92\nv_mov_b32 v7, s94")
    e(f"s_lshl_b32 s96, s2, 3\ns_add_u32 s96, s96, s{wreg}\ns_lshl_b32 s96, s96, 5")
    e(f"s_add_u32 s96, s96, {TS_OFF + kern * 0x40000}")
    e("v_mov_b32 v8, s96")
    e("s_mov_b64 exec, 1")
    e(f"global_store_dwordx4 v8, v[2:5], s[{WS}:{WS+1}]")
    e(f"global_store_dwordx2 v8, v[6:7], s[{WS}:{WS+1}] offset:16")


S_W, S_RB, S_SL, S_ROT1, S_ROT2 = 28, 29, 30, 31, 33

ACC = 64
XF = 8
WF = 24
VA = 48
VX, VCS, VST, VMSK = 52, 53, 58, 59
NEGM = 54
CSF = [60, 62, 2, 4]


def acc1(t, rt):
    return ACC + 8 * t + 4 * rt


def hreg(u, rt):
    return ACC + 16 * u + 4 * rt


def acc2(s, tile, rt):
    return ACC + 16 * (4 * s + tile) + 8 + 4 * rt


def stg(q):
    return ACC + 16 * (8 + q // 2) + 8 + 4 * (q % 2)


def conv_ops(u):
    b = ACC + 16 * u
    first, second = [], []
    for rt in range(2):
        o = b + 4 * rt
        first += [f"v_cvt_pk_bf16_f32 v{o}, v{o}, v{o+1}", f"v_cvt_pk_bf16_f32 v{o+1}, v{o+2}, v{o+3}",
                  f"v_pk_max_i16 v{o}, v{o}, 0", f"v_pk_max_i16 v{o+1}, v{o+1}, 0"]
        second += [f"v_cvt_pk_bf16_f32 v{o+2}, v{o+8}, v{o+9}", f"v_cvt_pk_bf16_f32 v{o+3}, v{o+10}, v{o+11}",
                   f"v_pk_max_i16 v{o+2}, v{o+2}, 0", f"v_pk_max_i16 v{o+3}, v{o+3}, 0"]
    return first + second


def frag_reads(t):
    b = WF + 4 * (t % 6)
    off = (t >> 2) * 4096
    return (f"ds_read_b64_tr_b16 {vr(b,2)}, v{VA+(t&3)} offset:{off}",
            f"ds_read_b64_tr_b16 {vr(b+2,2)}, v{VA+(t&3)} offset:{off+2048}")


def ffn_stage(e, mf, xnext=None, xneed=None, fill=None, extra=None):
    fill = dict(fill or {})

    def add(slot, ins):
        fill.setdefault(slot, [])
        fill[slot] = fill[slot] + [ins]
    add(2 * 13, "s_sub_u32 s40, s40, 1")
    add(2 * 14, "s_cselect_b32 s41, s43, s42")
    add(2 * 15, "s_cselect_b32 s40, 4, s40")
    add(2 * 16, f"v_add_u32 v{VA}, s41, v{VA}")
    add(2 * 17, f"v_add_u32 v{VA+1}, s41, v{VA+1}")
    add(2 * 18, f"v_add_u32 v{VA+2}, s41, v{VA+2}")
    add(2 * 21, f"v_add_u32 v{VA+3}, s41, v{VA+3}")
    for t in range(24):
        m0, m1 = mf(t)
        tn = (t + 5) % 24
        r0, r1 = frag_reads(tn)
        if t == 0 and xneed:
            e.need(("w", t), "x0")
        else:
            e.need(("w", t))
        e(m0)
        if t == 19:
            e("s_barrier")
        e.ds(r0, ("w", tn))
        if xnext is not None and t in (19, 20):
            p, off = xnext
            i = t - 19
            e.ds(f"ds_read_b128 {vr(XF+8*p+4*i,4)}, v{VX} offset:{off+1024*i}", f"x{i}")
        for ins in fill.get(2 * t, []):
            if isinstance(ins, tuple):
                e.ds(*ins)
            else:
                e(ins)
        if t == 0 and xneed:
            e.need("x1")
        e(m1)
        e.ds(r1, ("w", tn))
        for ins in fill.get(2 * t + 1, []):
            if isinstance(ins, tuple):
                e.ds(*ins)
            else:
                e(ins)
        if extra:
            extra(t)


def g1_mf(p, zero=False):
    def f(t):
        w = WF + 4 * (t % 6)
        out = []
        for rt in range(2):
            a = acc1(t, rt)
            c = "0" if zero else vr(a, 4)
            out.append(f"v_mfma_f32_16x16x32_bf16 {vr(a,4)}, {vr(w,4)}, {vr(XF+8*p+4*rt,4)}, {c}")
        return out
    return f


def g2_mf(s, half):
    def f(t):
        w = WF + 4 * (t % 6)
        u, tile = t >> 2, t & 3
        out = []
        for rt in range(2):
            a = acc2(s, tile, rt)
            c = "0" if (half == 0 and u == 0) else vr(a, 4)
            out.append(f"v_mfma_f32_16x16x32_bf16 {vr(a,4)}, {vr(w,4)}, {vr(hreg(half*6+u,rt),4)}, {c}")
        return out
    return f


def g2_epi(s):
    ops = []
    for cp in range(2):
        for rt in range(2):
            q = rt * 2 + cp
            d = stg(q)
            for i in range(2):
                a = acc2(s, 2 * cp + i, rt)
                ops.append(f"v_cvt_pk_bf16_f32 v{d+2*i}, v{a}, v{a+1}")
                ops.append(f"v_cvt_pk_bf16_f32 v{d+2*i+1}, v{a+2}, v{a+3}")
            ops.append(f"buffer_store_dwordx4 {vr(d,4)}, v{VST}, s[36:39], s44 offen offset:{q*1024} sc1")
    return ops


PST_UPD = ["s_add_u32 s44, s44, 4096", "s_cmp_eq_u32 s44, s46", "s_cselect_b32 s44, s45, s44"]


def ffn_compute(e):
    e.comment("---------------- FFN compute waves ----------------")
    e("s_setprio 1")
    e("v_lshrrev_b32 v1, 4, v0")
    e("v_and_b32 v2, 15, v0")
    e("v_lshrrev_b32 v3, 2, v2")
    e("v_and_b32 v4, 1, v1")
    e("v_lshl_add_u32 v4, v4, 2, v3")
    e("v_lshrrev_b32 v5, 1, v1")
    e("v_lshlrev_b32 v5, 10, v5")
    e("v_lshl_add_u32 v5, v4, 7, v5")
    e("v_and_b32 v6, 3, v2")
    e("v_lshl_add_u32 v5, v6, 3, v5")
    e(f"v_add_u32 v5, {WBASE}, v5")
    e("v_lshrrev_b32 v4, 1, v4")
    for t in range(4):
        e(f"v_xor_b32 v6, {t}, v4")
        e(f"v_lshl_add_u32 v{VA+t}, v6, 5, v5")
    e("v_and_b32 v4, 1, v3")
    e("v_lshlrev_b32 v4, 1, v4")
    e("v_lshrrev_b32 v5, 1, v3")
    e("v_mul_u32_u24 v5, 3, v5")
    e("v_xor_b32 v4, v4, v5")
    e("v_xor_b32 v4, v4, v1")
    e("v_lshlrev_b32 v4, 4, v4")
    e("v_lshl_add_u32 v4, v2, 6, v4")
    e(f"s_lshl_b32 s34, s{S_W}, 11")
    e(f"v_add_u32 v{VX}, s34, v4")
    e(f"v_lshlrev_b32 v{VCS}, 3, v2")
    e(f"v_add_u32 v{VCS}, {MISC}, v{VCS}")
    e(f"s_lshl_b32 s34, s{S_W}, 8")
    e(f"v_add_u32 v7, s34, v{VCS}")
    e(f"v_lshlrev_b32 v{VST}, 4, v0")
    e("v_cmp_gt_u32 vcc, 16, v0")
    e("s_mov_b32 s40, 4")
    e(f"s_mov_b32 s42, {WSLOT}")
    e(f"v_cndmask_b32 v{VMSK}, 0, -1, vcc")
    e(f"s_mov_b32 s43, {-4*WSLOT}")
    e(f"s_lshl_b32 s45, s{S_SL}, 4")
    e(f"s_add_u32 s45, s45, s{S_RB}")
    e("s_lshl_b32 s45, s45, 2")
    e(f"s_add_u32 s45, s45, s{S_W}")
    e("s_mul_i32 s45, s45, 36864")
    e("s_add_u32 s46, s45, 36864")
    e(f"s_lshl_b32 s44, s{S_ROT2}, 12")
    e("s_add_u32 s44, s44, s45")
    e("s_mov_b32 s47, 7")
    e("s_waitcnt lgkmcnt(0)")
    srd(e, 36, WS, NSL * XB, P_OFF)
    e("s_barrier")
    stamp_mid(e, 0)
    if OPT["stamp"]:
        e("s_waitcnt lgkmcnt(0)")
    for t in range(5):
        r0, r1 = frag_reads(t)
        e.ds(r0, ("w", t))
        if t < 2:
            e.ds(f"ds_read_b128 {vr(XF+4*t,4)}, v{VX} offset:{1024*t}", f"x{t}")
        e.ds(r1, ("w", t))
    q0 = list(e.q)
    ffn_stage(e, g1_mf(0, zero=True), xnext=(1, 8192), xneed=True)
    assert e.q == q0, (e.q, q0)
    e.label("L_g1")
    ffn_stage(e, g1_mf(1), xnext=(0, 0), xneed=True, fill={2: [f"v_xor_b32 v{VX}, 0x4000, v{VX}"]})
    ffn_stage(e, g1_mf(0), xnext=(1, 8192), xneed=True, fill={46: ["s_sub_u32 s47, s47, 1"]})
    assert e.q == q0
    e("s_cbranch_scc0 L_g1")
    pend = []
    LAG = 3

    def corr(t):
        f = CSF[t % 4]
        e.need(("cs", t))
        for rt in range(2):
            a = acc1(t, rt)
            e(f"v_mfma_f32_16x16x16_bf16 {vr(a,4)}, {vr(f,2)}, {vr(NEGM+2*rt,2)}, {vr(a,4)}")
            for _ in range(2):
                if pend:
                    e(pend.pop(0))

    def extra17(t):
        if t == 1:
            e.need("st")
            for rt in range(2):
                n = NEGM + 2 * rt
                e(f"v_xor_b32 v{n}, 0x80000000, v{n}")
                e(f"v_and_b32 v{n}, v{n}, v{VMSK}")
                e(f"v_lshrrev_b32 v{n+1}, 16, v{n}")
                e(f"v_or_b32 v{n}, v{n}, v{n+1}")
        tc = t - LAG
        if tc >= 0:
            if tc >= 3 and tc % 2 == 1:
                pend.extend(conv_ops((tc - 3) // 2))
            corr(tc)
    fill17 = {}
    fill17[0] = [(f"ds_read_b32 v{NEGM}, v7 offset:3072", "st"), (f"ds_read_b32 v{NEGM+2}, v7 offset:3200", "st")]
    for t in range(24):
        fill17.setdefault(2 * t, [])
        fill17[2 * t] = fill17[2 * t] + [(f"ds_read_b64_tr_b16 {vr(CSF[t%4],2)}, v{VCS} offset:{t*128}", ("cs", t))]
    ffn_stage(e, g1_mf(1), xneed=True, fill=fill17, extra=extra17)
    for tc in range(24 - LAG, 24):
        if tc % 2 == 1:
            pend.extend(conv_ops((tc - 3) // 2))
        corr(tc)
    pend.extend(conv_ops(11))
    done = 192 - len(pend)
    stamp_mid(e, 1)
    while done < 64:
        e(pend.pop(0))
        done += 1
    fills = [{}, {}]
    pr = 0
    rest = len(pend)
    npairs = 43
    for k in range(rest):
        u = (done + k) // 16
        pos = min((k * npairs) // rest, max(0, 4 * u - 1))
        st, t = divmod(pos, 24)
        fills[st].setdefault(2 * t, []).append(pend[k])
    e("s_mov_b32 s47, 3")
    ffn_stage(e, g2_mf(0, 0), fill=fills[0])
    ffn_stage(e, g2_mf(0, 1), fill=fills[1])
    q1 = list(e.q)
    e.label("L_g2")

    def epi_fill(s):
        ops = g2_epi(s)
        slots = [2, 3, 4, 5, 6, 7, 8, 9, 10, 11, 12, 20, 22, 23]
        f = {}
        f2 = {}
        for k, op in enumerate(ops):
            if k < len(slots):
                f[2 * slots[k]] = [op]
            else:
                f2[2 * (k - len(slots))] = [op]
        for k, op in enumerate(PST_UPD):
            f2[2 * (8 + k)] = [op]
        return f, f2
    for s in (1, 0):
        f, f2 = epi_fill(1 - s)
        if s == 0:
            f2[46] = ["s_sub_u32 s47, s47, 1"]
        ffn_stage(e, g2_mf(s, 0), fill=f)
        ffn_stage(e, g2_mf(s, 1), fill=f2)
    assert e.q == q1
    e("s_cbranch_scc0 L_g2")
    stamp_mid(e, 2)
    e("s_nop 1")
    for op in g2_epi(0):
        e(op)
    e.q = []
    stamp_end(e, 1, S_W, "fc")
    e("s_endpgm")


def ffn_aux(e):
    e.comment("---------------- FFN loader waves ----------------")
    sw = 34
    e(f"s_sub_u32 s{sw}, s{S_W}, 4")
    e("v_lshrrev_b32 v1, 3, v0")
    e("v_and_b32 v2, 7, v0")
    e("v_and_b32 v3, 6, v1")
    e("v_xor_b32 v2, v2, v3")
    e("v_lshlrev_b32 v2, 4, v2")
    e(f"s_and_b32 s35, s{sw}, 1")
    e("s_lshl_b32 s35, s35, 4")
    e(f"s_lshr_b32 s48, s{sw}, 1")
    e("s_lshl_b32 s48, s48, 2")
    e("s_add_u32 s35, s35, s48")
    e("v_lshrrev_b32 v3, 2, v1")
    e("v_and_b32 v4, 3, v1")
    e("v_lshl_add_u32 v3, v3, 3, v4")
    e("v_add_u32 v3, s35, v3")
    e("v_mul_u32_u24 v3, 9216, v3")
    e("v_add_u32 v10, v3, v2")
    e(f"s_lshl_b32 s35, s{sw}, 3")
    e("v_add_u32 v3, s35, v1")
    e("v_mul_u32_u24 v3, 1152, v3")
    e("v_add_u32 v11, v3, v2")
    e("v_lshrrev_b32 v1, 2, v0")
    e("v_lshrrev_b32 v3, 4, v0")
    e("v_and_b32 v4, 1, v3")
    e("v_lshlrev_b32 v4, 1, v4")
    e("v_lshrrev_b32 v5, 1, v3")
    e("v_mul_u32_u24 v5, 3, v5")
    e("v_xor_b32 v4, v4, v5")
    e("v_and_b32 v5, 3, v0")
    e("v_xor_b32 v4, v4, v5")
    e(f"s_lshl_b32 s35, s{sw}, 5")
    e("v_add_u32 v1, s35, v1")
    e("v_mul_u32_u24 v1, 1152, v1")
    e("v_lshl_add_u32 v12, v4, 4, v1")
    e("v_add_u32 v13, 18432, v12")
    e("v_lshlrev_b32 v14, 4, v0")
    e(f"s_mul_i32 s50, s{S_SL}, 768")
    e(f"s_mul_i32 s51, s{S_RB}, 147456")
    e(f"s_mov_b32 s52, s{S_ROT1}")
    e(f"s_lshl_b32 s53, s{sw}, 10")
    e(f"s_add_u32 s53, s53, {WBASE}")
    e(f"s_add_u32 s54, s53, {5*WSLOT}")
    e("s_mov_b32 s55, s53")
    e(f"s_lshl_b32 s56, s{sw}, 11")
    e("s_mov_b32 s57, 0")
    e("s_waitcnt lgkmcnt(0)")
    srd(e, 36, W1, WB)
    srd(e, 40, Q, XB)
    srd(e, 44, W2, WB)
    srd(e, 60, WS, CS_SZ + ST_SZ, CS_OFF)
    e("s_branch L_a1i")
    e.label("L_a1")
    e("s_waitcnt vmcnt(16)")
    e("s_barrier")
    e.label("L_a1i")
    e("s_mul_i32 s58, s52, 294912")
    e("s_add_u32 s58, s58, s50")
    e("s_lshl_b32 s59, s52, 6")
    e("s_add_u32 s59, s59, s51")
    e("s_mov_b32 m0, s56")
    e("s_add_u32 s52, s52, 1")
    e("buffer_load_dwordx4 v12, s[40:43], s59 offen lds")
    e("s_add_u32 m0, s56, 1024")
    e("s_cmp_eq_u32 s52, 18")
    e("buffer_load_dwordx4 v13, s[40:43], s59 offen lds")
    e("s_cselect_b32 s52, 0, s52")
    for cg in range(6):
        e(f"s_add_u32 m0, s55, {cg*(4096-128)}")
        e("s_nop 0")
        e(f"buffer_load_dwordx4 v10, s[36:39], s58 offen offset:{cg*128} lds")
    e("s_add_u32 s56, s56, 8192")
    e("s_and_b32 s56, s56, 0x7fff")
    e(f"s_add_u32 s55, s55, {WSLOT}")
    e("s_cmp_eq_u32 s55, s54")
    e("s_cselect_b32 s55, s53, s55")
    e("s_add_u32 s57, s57, 1")
    e("s_cmp_lt_u32 s57, 3")
    e("s_cbranch_scc1 L_a1i")
    e("s_cmp_lt_u32 s57, 18")
    e("s_cbranch_scc1 L_a1")
    e(f"s_mul_i32 s58, s{S_SL}, 3072")
    e(f"s_lshl_b32 s59, s{sw}, 10")
    e("s_add_u32 s58, s58, s59")
    e(f"s_add_u32 m0, s59, {MISC}")
    e(f"s_lshl_b32 s59, s{S_RB}, 10")
    e(f"s_add_u32 s59, s59, {CS_SZ}")
    e(f"s_cmp_eq_u32 s{sw}, 3")
    e("s_cselect_b32 s58, s59, s58")
    e("buffer_load_dwordx4 v14, s[60:63], s58 offen lds")
    e(f"s_mul_i32 s50, s{S_SL}, {384*1152}")
    e(f"s_mov_b32 s52, s{S_ROT2}")
    e("s_mov_b32 s57, 0")
    e.label("L_a2")
    e("s_lshl_b32 s58, s52, 7")
    e("s_add_u32 s58, s58, s50")
    for half in range(2):
        e("s_waitcnt vmcnt(12)")
        e("s_barrier")
        for u in range(6):
            e(f"s_add_u32 m0, s55, {u*4096}")
            e("s_nop 0")
            e("buffer_load_dwordx4 v11, s[44:47], s58 offen lds")
            e("s_add_u32 s58, s58, 36864")
        e(f"s_add_u32 s55, s55, {WSLOT}")
        e("s_cmp_eq_u32 s55, s54")
        e("s_cselect_b32 s55, s53, s55")
    e("s_add_u32 s52, s52, 1")
    e("s_cmp_eq_u32 s52, 9")
    e("s_cselect_b32 s52, 0, s52")
    e("s_add_u32 s57, s57, 1")
    e("s_cmp_lt_u32 s57, 9")
    e("s_cbranch_scc1 L_a2")
    e("s_waitcnt vmcnt(12)\ns_barrier\ns_waitcnt vmcnt(6)\ns_barrier\ns_waitcnt vmcnt(0)\ns_barrier")
    stamp_end(e, 1, S_W, "fa")
    e("s_endpgm")


S_G = 29


def conv_role(e):
    e.comment("---------------- conv role ----------------")
    KR, VR_, TR, TF = 16, 60, 92, 104
    e(f"s_lshl_b32 s34, s{S_W}, 5")
    e("v_lshrrev_b32 v1, 1, v0")
    e("v_add_u32 v1, s34, v1")
    e("v_and_b32 v2, 1, v0")
    e(f"s_mul_i32 s35, s{S_G}, 24")
    e("v_mul_u32_u24 v3, 9216, v1")
    e("v_mul_u32_u24 v4, 12, v2")
    e("v_add3_u32 v3, v3, v4, s35")
    e("v_subrev_u32 v4, 3456, v3")
    e("v_cmp_eq_u32 vcc, 0, v1")
    e("v_bfrev_b32 v5, 1")
    e("v_mul_u32_u24 v6, 48, v2")
    e("v_cndmask_b32 v4, v4, v5, vcc")
    e(f"s_mul_i32 s48, s{S_G}, 96")
    e("s_movk_i32 s49, 4608")
    e("s_waitcnt lgkmcnt(0)")
    srd(e, 36, KK, XB)
    srd(e, 40, VV, XB)
    srd(e, 44, SH, 576 * 8)
    srd(e, 52, SK, XB)
    srd(e, 56, WS, XB, Y_OFF)
    for i in range(3):
        e(f"buffer_load_dwordx4 {vr(TR+4*i,4)}, v6, s[44:47], s48 offen offset:{16*i}")
    loads = []
    for j in range(3):
        loads.append(f"buffer_load_dwordx3 {vr(KR+4*j,3)}, v4, s[36:39], 0 offen offset:{j*1152}")
    for j in range(8):
        so = "0" if j < 4 else "s49"
        loads.append(f"buffer_load_dwordx3 {vr(KR+4*(3+j),3)}, v3, s[36:39], {so} offen offset:{(j%4)*1152}")
    for j in range(8):
        so = "0" if j < 4 else "s49"
        loads.append(f"buffer_load_dwordx3 {vr(VR_+4*j,3)}, v3, s[40:43], {so} offen offset:{(j%4)*1152}")
    main = loads[3:]
    for a in range(6):
        if a < 5:
            e(f"s_cmp_lg_u32 s30, {a}")
            e(f"s_cbranch_scc1 L_cv{a+1}")
        st = (a * 16) // 6
        for ld in main[st:] + main[:st] + loads[:3]:
            e(ld)
        if a < 5:
            e("s_branch L_cvd")
            e.label(f"L_cv{a+1}")
    e.label("L_cvd")
    e("v_sub_u32 v7, 255, v1")
    e("v_lshlrev_b32 v7, 4, v7")
    e(f"v_mul_u32_u24 v8, {6*UROW}, v2")
    e("v_add_u32 v7, v7, v8")
    e(f"s_lshl_b32 s34, s{S_W}, 6")
    e("v_add_u32 v8, s34, v0")
    e("v_lshrrev_b32 v9, 5, v8")
    e("v_and_b32 v8, 31, v8")
    e(f"v_mul_u32_u24 v9, {UROW}, v9")
    e("v_lshl_add_u32 v8, v8, 4, v9")
    e("v_mov_b32 v12, 0\nv_mov_b32 v13, 0\nv_mov_b32 v14, 0\nv_mov_b32 v15, 0")
    e(f"s_cmp_ge_u32 s{S_W}, 6")
    e("s_cbranch_scc1 L_cnz")
    e("ds_write_b128 v8, v[12:15] offset:4096")
    e.label("L_cnz")
    e(f"s_mul_i32 s50, s{S_G}, 12")
    e(f"s_and_b32 s34, s{S_W}, 3")
    e("s_add_u32 s50, s50, s34")
    e("s_lshl_b32 s51, s50, 12")
    e(f"s_cmp_ge_u32 s{S_W}, 4")
    e("s_cbranch_scc1 L_caux1")
    A0R = 200
    e("v_and_b32 v9, 15, v0")
    e("v_lshrrev_b32 v10, 4, v0")
    e("v_lshl_add_u32 v11, v10, 3, v9")
    e("s_add_u32 s60, s51, 16384")
    e("s_add_u32 s61, s51, 32768")
    e("s_lshl_b32 s62, s50, 1")
    e("s_and_b32 s62, s62, -4")
    e(f"s_load_dword s64, s[{DD}:{DD+1}], s62")
    e("s_add_u32 s62, s62, 8")
    e(f"s_load_dword s65, s[{DD}:{DD+1}], s62")
    e("s_add_u32 s62, s62, 8")
    e(f"s_load_dword s66, s[{DD}:{DD+1}], s62")
    for j in range(8):
        e(f"v_add_u32 v12, {j-15}, v11")
        e("v_cmp_gt_i32 vcc, 0, v12")
        e("v_lshlrev_b32 v12, 1, v12")
        e("s_nop 0")
        e("v_cndmask_b32 v12, v12, v5, vcc")
        for r, so in enumerate(("s51", "s60", "s61")):
            e(f"buffer_load_ushort v{A0R+8*r+j}, v12, s[52:55], {so} offen")
    e("s_waitcnt vmcnt(24)")
    e("s_branch L_ckv")
    e.label("L_caux1")
    KV = 200
    e("s_mov_b32 s62, 53687092")
    e("s_mov_b32 s63, 214748365")
    e("s_mov_b32 s64, 429496730")
    for i in range(5):
        e(f"v_add_u32 v9, {64*i}, v0")
        e("v_mul_hi_u32 v10, v9, s62")
        e("v_mul_u32_u24 v11, 80, v10")
        e("v_sub_u32 v9, v9, v11")
        e("v_mul_hi_u32 v11, v9, s63")
        e("v_mul_u32_u24 v12, 20, v11")
        e("v_sub_u32 v9, v9, v12")
        e("v_mul_hi_u32 v12, v9, s64")
        e("v_mul_u32_u24 v13, 10, v12")
        e("v_sub_u32 v9, v9, v13")
        e("v_lshl_add_u32 v10, v10, 1, v12")
        e("v_lshlrev_b32 v10, 8, v10")
        e("v_lshl_add_u32 v10, v9, 3, v10")
        e("v_add3_u32 v10, v10, v11, -15")
        e("v_lshlrev_b32 v10, 1, v10")
        e(f"v_add_u32 v{KV+i}, s51, v10")
    e("s_mul_i32 s60, s34, 20480")
    e(f"s_add_u32 s60, s60, {KBASE}")

    def chunk(qq):
        for i in range(5):
            e(f"s_add_u32 m0, s60, {qq*5120+i*1024}")
            e("s_nop 0")
            e(f"buffer_load_dwordx4 v{KV+i}, s[52:55], 0 offen lds")
            e(f"v_add_u32 v{KV+i}, {128 if qq < 3 else 16384-384}, v{KV+i}")
    for qq in range(4):
        chunk(qq)
    e("v_lshrrev_b32 v9, 5, v0")
    e("v_and_b32 v10, 31, v0")
    e("v_lshlrev_b32 v9, 14, v9")
    e("v_lshl_add_u32 v9, v10, 7, v9")
    e("s_add_u32 s61, s51, 16384")
    e("buffer_load_dword v210, v9, s[52:55], s61 offen")
    e("s_waitcnt vmcnt(21)")
    e.label("L_ckv")
    stamp_mid(e, 0)
    for i in range(12):
        e(f"v_lshlrev_b32 v{TF+2*i}, 16, v{TR+i}")
        e(f"v_and_b32 v{TF+2*i+1}, 0xffff0000, v{TR+i}")
    KU, VU, OU = 130, 142, 150
    e("s_mov_b32 s35, 0xffff0000")
    for c in range(6):
        d, hi = c >> 1, c & 1

        def unp(dst, src):
            e(f"v_and_b32 v{dst}, s35, v{src}" if hi else f"v_lshlrev_b32 v{dst}, 16, v{src}")
        for j in range(11):
            unp(KU + j, KR + 4 * j + d)
        for j in range(8):
            unp(VU + j, VR_ + 4 * j + d)
        w = TF + 4 * c
        for j in range(8):
            e(f"v_mul_f32 v{OU+j}, v{KU+j}, v{w+3}")
        for tap in (2, 1, 0):
            for j in range(8):
                e(f"v_fmac_f32 v{OU+j}, v{KU+j+3-tap}, v{w+tap}")
        for j in range(8):
            e(f"v_mul_f32 v{OU+j}, v{OU+j}, v{VU+j}")
        pk = 160 + 4 * c
        for dd in range(4):
            e(f"v_cvt_pk_bf16_f32 v{pk+dd}, v{OU+7-2*dd}, v{OU+6-2*dd}")
        e(f"ds_write_b128 v7, {vr(pk,4)} offset:{c*UROW}")
    e("s_waitcnt vmcnt(0) lgkmcnt(0)")
    e("s_barrier")
    stamp_mid(e, 1)
    e(f"s_cmp_lt_u32 s{S_W}, 4")
    e("s_cbranch_scc1 L_cmf")
    e("s_mov_b32 s61, 0")
    e.label("L_ca2")
    for qq in range(4):
        e("s_waitcnt vmcnt(10)")
        e("s_barrier")
        chunk(qq)
    e("s_add_u32 s61, s61, 1")
    e("s_cmp_lt_u32 s61, 2")
    e("s_cbranch_scc1 L_ca2")
    e("s_waitcnt vmcnt(0)")
    e("s_barrier")
    stamp_end(e, 1, S_W, "ca")
    e("s_endpgm")
    e.label("L_cmf")
    e("s_setprio 1")
    AF, BF, AC, A0 = 16, 80, 144, 176
    VKA, VUB, VKV, VY = 2, 3, 4, 6
    for r in range(3):
        for dd in range(4):
            e(f"v_lshl_or_b32 v{A0+4*r+dd}, v{A0R+8*r+2*dd+1}, 16, v{A0R+8*r+2*dd}")
    e("v_and_b32 v9, 15, v0")
    e("v_lshrrev_b32 v10, 4, v0")
    e("v_and_b32 v11, 3, v9")
    e("v_mul_u32_u24 v11, 320, v11")
    e("v_and_b32 v12, 12, v9")
    e("v_lshl_add_u32 v12, v10, 3, v12")
    e("v_lshl_add_u32 v11, v12, 1, v11")
    e(f"s_mul_i32 s60, s{S_W}, 20480")
    e(f"s_add_u32 s60, s60, {KBASE}")
    e(f"v_add_u32 v{VKA}, s60, v11")
    e(f"s_mul_i32 s60, s{S_W}, {UROW}")
    e("v_lshlrev_b32 v11, 5, v9")
    e("v_sub_u32 v11, s60, v11")
    e(f"v_lshl_add_u32 v{VUB}, v10, 4, v11")
    e(f"v_add_u32 v{VUB}, 480, v{VUB}")
    e("v_lshlrev_b32 v12, 3, v10")
    e(f"v_sub_u32 v{VKV}, v11, v12")
    e(f"v_add_u32 v{VKV}, 504, v{VKV}")
    e("v_lshl_add_u32 v11, v9, 2, v10")
    e(f"v_lshlrev_b32 v{VY}, 4, v11")
    e("s_and_b32 s62, s50, 1")
    e("s_xor_b32 s62, s62, 1")
    e("s_lshl_b32 s62, s62, 4")
    for r in range(3):
        e(f"s_lshl_b32 s{64+r}, s{64+r}, s62")
        e(f"s_and_b32 s{64+r}, s{64+r}, s35")

    def reads(rho, nxt):
        p = rho & 1
        qq, rp = rho >> 1, rho & 1
        out = []
        for b in range(8):
            g = b
            out.append(f"ds_read_b128 {vr(BF+32*p+4*g,4)}, v{VUB} offset:{(7-g)*512+rho*64+(4*UROW if nxt else 0)}")
            if rho == 0 and b == 0:
                continue
            off = qq * 5120 + (b >> 1) * 1280 + (b & 1) * 160 + rp * 64
            out.append(f"ds_read_b64 {vr(AF+32*p+4*b,2)}, v{VKA} offset:{off}")
            out.append(f"ds_read_b64 {vr(AF+32*p+4*b+2,2)}, v{VKA} offset:{off+8}")
        return out
    for k, r in enumerate(reads(0, False)):
        e(r)
    e("s_mov_b32 s61, 0")
    e.label("L_cm")
    for rho in range(8):
        p = rho & 1
        e("s_waitcnt lgkmcnt(0)")
        if p == 1:
            e("s_barrier")
        rd = reads((rho + 1) % 8, rho == 7)
        if rho == 7:
            rd = rd + [f"ds_read_b64 {vr(208+2*t,2)}, v{VKV} offset:{(7-t)*512}" for t in range(8)]
        for b in range(8):
            for g in range(8 - b):
                a = A0 if (rho == 0 and b == 0) else AF + 32 * p + 4 * b
                c = AC + 4 * (b + g)
                cc = "0" if (rho == 0 and b == 0) else vr(c, 4)
                e(f"v_mfma_f32_16x16x32_bf16 {vr(c,4)}, {vr(a,4)}, {vr(BF+32*p+4*g,4)}, {cc}")
                if rd:
                    e(rd.pop(0))
        assert not rd
    e("s_waitcnt lgkmcnt(0)")
    for t in range(8):
        c = AC + 4 * t
        kv = 208 + 2 * t
        T = 224
        o = 240 + 4 * ((t >> 1) & 1) + 2 * (t & 1)
        e(f"v_and_b32 v{T}, s35, v{kv+1}")
        e(f"v_lshlrev_b32 v{T+1}, 16, v{kv+1}")
        e(f"v_and_b32 v{T+2}, s35, v{kv}")
        e(f"v_lshlrev_b32 v{T+3}, 16, v{kv}")
        for r in range(4):
            e(f"v_mul_f32 v{T+r}, s64, v{T+r}")
        e(f"v_cvt_pk_bf16_f32 v{T}, v{T}, v{T+1}")
        e(f"v_cvt_pk_bf16_f32 v{T+2}, v{T+2}, v{T+3}")
        e(f"v_cvt_pk_bf16_f32 v{T+4}, v{c}, v{c+1}")
        e(f"v_cvt_pk_bf16_f32 v{T+6}, v{c+2}, v{c+3}")
        for b in (T, T + 2, T + 4, T + 6):
            e(f"v_and_b32 v{b+1}, s35, v{b}")
            e(f"v_lshlrev_b32 v{b}, 16, v{b}")
        for r in range(4):
            e(f"v_add_f32 v{T+r}, v{T+r}, v{T+4+r}")
        e(f"v_cvt_pk_bf16_f32 v{o}, v{T}, v{T+1}")
        e(f"v_cvt_pk_bf16_f32 v{o+1}, v{T+2}, v{T+3}")
        if t & 1:
            e(f"buffer_store_dwordx4 {vr(o-2,4)}, v{VY}, s[56:59], s51 offen offset:{(t>>1)*1024} sc1")
    for dd in range(8):
        e(f"v_mov_b32 v{A0+dd}, v{A0+4+dd}")
    e(f"v_add_u32 v{VUB}, {4*UROW}, v{VUB}")
    e(f"v_add_u32 v{VKV}, {4*UROW}, v{VKV}")
    e("s_mov_b32 s64, s65\ns_mov_b32 s65, s66")
    e("s_add_u32 s51, s51, 16384")
    e("s_add_u32 s61, s61, 1")
    e("s_cmp_lt_u32 s61, 3")
    e("s_cbranch_scc1 L_cm")
    stamp_end(e, 1, S_W, "cm")
    e("s_endpgm")


def helper_role(e, kern):
    e.comment("---------------- helper role ----------------")
    XR, XU = 16, 96
    e("v_lshrrev_b32 v1, 2, v0")
    e(f"s_lshl_b32 s34, s{S_W}, 4")
    e("s_lshl_b32 s35, s29, 7")
    e("s_add_u32 s34, s34, s35")
    e("v_add_u32 v1, s34, v1")
    e("v_mul_u32_u24 v2, 1152, v1")
    e("v_and_b32 v3, 3, v0")
    e("v_lshl_add_u32 v2, v3, 4, v2")
    e(f"s_lshl_b32 s34, s{S_W}, 6")
    e("v_add_u32 v4, s34, v0")
    e("s_mov_b32 s35, 119304648")
    e("v_mul_hi_u32 v5, v4, s35")
    e("v_mul_u32_u24 v6, 36, v5")
    e("v_sub_u32 v6, v4, v6")
    e("v_mul_u32_u24 v7, 9216, v5")
    e("v_lshl_add_u32 v7, v6, 4, v7")
    e("v_cmp_le_u32 vcc, 504, v4")
    e("v_bfrev_b32 v8, 1")
    e("s_mul_i32 s48, s29, 576")
    e("v_cndmask_b32 v7, v7, v8, vcc")
    e("s_waitcnt lgkmcnt(0)")
    srd(e, 36, Q, XB)
    srd(e, 40, W1, WB)
    srd(e, 44, WS, CS_SZ + ST_SZ, CS_OFF)
    for j in range(18):
        e(f"buffer_load_dwordx4 {vr(XR+4*j,4)}, v2, s[36:39], 0 offen offset:{64*j}")
    e("s_mov_b32 s35, 0xffff0000")
    e("v_mov_b32 v9, 0\nv_mov_b32 v10, 0")
    for j in range(18):
        e(f"s_waitcnt vmcnt({17-j})")
        for d in range(4):
            s, u = XR + 4 * j + d, XU + 8 * j + 2 * d
            e(f"v_lshlrev_b32 v{u}, 16, v{s}")
            e(f"v_and_b32 v{u+1}, s35, v{s}")
            e(f"v_add_f32 v9, v9, v{u}")
            e(f"v_add_f32 v10, v10, v{u+1}")
    NB = 14
    for j in range(NB):
        e(f"buffer_load_dwordx4 {vr(XR+4*j,4)}, v7, s[40:43], s48 offen")
        e(f"s_add_u32 s48, s48, {14*9216}")
    e("v_add_f32 v9, v9, v10")
    e("s_nop 1")
    e("v_add_f32_dpp v9, v9, v9 quad_perm:[1,0,3,2] row_mask:0xf bank_mask:0xf")
    e("s_nop 1")
    e("v_add_f32_dpp v9, v9, v9 quad_perm:[2,3,0,1] row_mask:0xf bank_mask:0xf")
    e("v_mul_f32 v9, 0x3ae38e39, v9")
    e("v_mov_b32 v10, 0\nv_mov_b32 v11, 0")
    for j in range(0, 144, 2):
        e(f"v_sub_f32 v{XU+j}, v{XU+j}, v9")
        e(f"v_sub_f32 v{XU+j+1}, v{XU+j+1}, v9")
        e(f"v_fmac_f32 v10, v{XU+j}, v{XU+j}")
        e(f"v_fmac_f32 v11, v{XU+j+1}, v{XU+j+1}")
    e("v_add_f32 v10, v10, v11")
    e("s_nop 1")
    e("v_add_f32_dpp v10, v10, v10 quad_perm:[1,0,3,2] row_mask:0xf bank_mask:0xf")
    e("s_nop 1")
    e("v_add_f32_dpp v10, v10, v10 quad_perm:[2,3,0,1] row_mask:0xf bank_mask:0xf")
    e("v_mul_f32 v10, 0x3ae38e39, v10")
    e("v_cvt_pk_bf16_f32 v10, v10, v9")
    e("v_and_b32 v12, s35, v10")
    e("v_lshlrev_b32 v10, 16, v10")
    e("v_add_f32 v10, 0x3727c5ac, v10")
    e("v_cvt_pk_bf16_f32 v10, v10, v10")
    e("v_lshlrev_b32 v10, 16, v10")
    e("v_sqrt_f32 v10, v10")
    e("s_nop 0")
    e("v_cvt_pk_bf16_f32 v10, v10, v10")
    e("v_lshlrev_b32 v10, 16, v10")
    e("v_rcp_f32 v13, v10")
    e("v_lshlrev_b32 v1, 3, v1")
    e("v_cmp_ne_u32 vcc, 0, v3")
    e(f"s_mov_b32 s49, {CS_SZ}")
    e("s_nop 0")
    e("v_cndmask_b32 v1, v1, v8, vcc")
    e("buffer_store_dwordx2 v[12:13], v1, s[44:47], s49 offen sc1")
    CA = 96
    for d in range(8):
        e(f"v_mov_b32 v{CA+d}, 0")
    e("s_mov_b32 s50, 0")
    e.label(f"L_h{kern}")
    for j in range(NB):
        e(f"s_waitcnt vmcnt({NB-1})")
        for d in range(4):
            s = XR + 4 * j + d
            e(f"v_lshlrev_b32 v104, 16, v{s}")
            e(f"v_and_b32 v105, s35, v{s}")
            e(f"v_add_f32 v{CA+2*d}, v{CA+2*d}, v104")
            e(f"v_add_f32 v{CA+2*d+1}, v{CA+2*d+1}, v105")
        e(f"buffer_load_dwordx4 {vr(XR+4*j,4)}, v7, s[40:43], s48 offen")
        e(f"s_add_u32 s48, s48, {14*9216}")
    e("s_add_u32 s50, s50, 1")
    e("s_cmp_lt_u32 s50, 3")
    e(f"s_cbranch_scc1 L_h{kern}")
    e("v_lshlrev_b32 v9, 5, v4")
    e(f"ds_write_b128 v9, {vr(CA,4)}")
    e(f"ds_write_b128 v9, {vr(CA+4,4)} offset:16")
    e("s_waitcnt vmcnt(0) lgkmcnt(0)")
    e("s_barrier")
    e("v_lshlrev_b32 v9, 2, v4")
    for j in range(14):
        e(f"ds_read_b32 v{XR+j}, v9 offset:{j*1152}")
    e("v_lshrrev_b32 v10, 4, v4")
    e("v_and_b32 v11, 15, v4")
    e("v_lshlrev_b32 v10, 7, v10")
    e("v_lshl_add_u32 v10, v11, 1, v10")
    e("v_cmp_le_u32 vcc, 288, v4")
    e("s_mul_i32 s49, s29, 2304")
    e("s_waitcnt lgkmcnt(0)")
    e("v_cndmask_b32 v10, v10, v8, vcc")
    for j in range(1, 14):
        e(f"v_add_f32 v{XR}, v{XR}, v{XR+j}")
    for k in range(3):
        e(f"v_cvt_pk_bf16_f32 v{40+k}, v{XR}, v{XR}")
        e(f"v_and_b32 v12, s35, v{40+k}")
        e(f"v_sub_f32 v{XR}, v{XR}, v12")
        e(f"buffer_store_short v{40+k}, v10, s[44:47], s49 offen offset:{32*k} sc1")
    e("v_mov_b32 v43, 0")
    e("buffer_store_short v43, v10, s[44:47], s49 offen offset:96 sc1")


def reduce_kernel(e):
    e("s_cmp_ge_u32 s2, 576")
    e("s_cbranch_scc1 L_rexit")
    stamp_begin(e)
    load_args(e)
    wave_id(e, S_W)
    e("v_and_b32 v1, 15, v0")
    e("v_lshrrev_b32 v2, 4, v0")
    e("v_lshlrev_b32 v3, 4, v0")
    e("s_lshl_b32 s29, s2, 2")
    e(f"s_add_u32 s29, s29, s{S_W}")
    e("s_lshl_b32 s30, s29, 10")
    e("s_mul_hi_u32 s31, s2, 477218589")
    e("s_mul_i32 s33, s31, 9")
    e("s_sub_u32 s33, s2, s33")
    e("s_lshl_b32 s31, s31, 1")
    e(f"s_lshr_b32 s34, s{S_W}, 1")
    e("s_add_u32 s31, s31, s34")
    e("s_lshl_b32 s33, s33, 1")
    e(f"s_and_b32 s34, s{S_W}, 1")
    e("s_add_u32 s33, s33, s34")
    e("v_mul_u32_u24 v4, 1152, v1")
    e("v_lshl_add_u32 v5, v2, 3, v4")
    e("v_and_b32 v6, 1, v2")
    e("v_lshlrev_b32 v6, 5, v6")
    e("v_lshrrev_b32 v7, 1, v2")
    e("v_lshl_add_u32 v6, v7, 4, v6")
    e("v_add_u32 v6, v6, v4")
    e("v_lshrrev_b32 v7, 2, v1")
    e("v_lshlrev_b32 v7, 4, v7")
    e("v_and_b32 v8, 3, v1")
    e("v_lshl_add_u32 v7, v8, 1, v7")
    e("v_lshl_add_u32 v7, v2, 14, v7")
    e("v_lshlrev_b32 v8, 3, v1")
    e("s_mul_i32 s48, s31, 18432")
    e("s_lshl_b32 s49, s33, 6")
    e("s_add_u32 s48, s48, s49")
    e("s_lshl_b32 s49, s33, 17")
    e("s_lshr_b32 s50, s31, 5")
    e("s_lshl_b32 s50, s50, 10")
    e("s_add_u32 s49, s49, s50")
    e("s_and_b32 s50, s31, 15")
    e("s_lshl_b32 s50, s50, 6")
    e("s_add_u32 s49, s49, s50")
    e("s_lshr_b32 s50, s31, 1")
    e("s_and_b32 s50, s50, 8")
    e("s_add_u32 s49, s49, s50")
    e("s_lshl_b32 s50, s31, 7")
    e(f"s_add_u32 s50, s50, {CS_SZ}")
    e("s_waitcnt lgkmcnt(0)")
    srd(e, 36, WS, NSL * XB, P_OFF)
    srd(e, 40, Q, XB)
    srd(e, 44, WS, XB, Y_OFF)
    srd(e, 52, WS, CS_SZ + ST_SZ, CS_OFF)
    srd(e, 56, OUT, XB)
    PR, YR, XR, SR_ = 32, 16, 10, 14
    e(f"buffer_load_dwordx2 {vr(SR_,2)}, v8, s[52:55], s50 offen")
    e(f"buffer_load_dwordx2 {vr(XR,2)}, v5, s[40:43], s48 offen")
    e(f"buffer_load_dwordx2 {vr(XR+2,2)}, v5, s[40:43], s48 offen offset:32")
    for k in range(8):
        e(f"buffer_load_ushort v{YR+k}, v7, s[44:47], s49 offen")
        e(f"s_add_u32 s49, s49, {4096 if k != 3 else 13*4096}")
    for j in range(NSL):
        e(f"buffer_load_dwordx4 {vr(PR+4*j,4)}, v3, s[36:39], s30 offen")
        e(f"s_add_u32 s30, s30, {XB}")
    e("s_mov_b32 s35, 0xffff0000")
    XU, T = 24, 80

    def rnd(base):
        for d in range(4):
            e(f"v_cvt_pk_bf16_f32 v{base+2*d}, v{base+2*d}, v{base+2*d+1}")
        for d in range(4):
            e(f"v_and_b32 v{base+2*d+1}, s35, v{base+2*d}")
            e(f"v_lshlrev_b32 v{base+2*d}, 16, v{base+2*d}")
    e(f"s_waitcnt vmcnt({NSL+8})")
    for d in range(4):
        e(f"v_lshlrev_b32 v{XU+2*d}, 16, v{XR+d}")
        e(f"v_and_b32 v{XU+2*d+1}, s35, v{XR+d}")
    for k in range(8):
        e(f"v_sub_f32 v{T+k}, v{XU+k}, v{SR_}")
    rnd(T)
    for k in range(8):
        e(f"v_mul_f32 v{T+k}, v{T+k}, v{SR_+1}")
    rnd(T)
    e(f"s_waitcnt vmcnt({NSL})")
    for k in range(8):
        e(f"v_lshlrev_b32 v{YR+k}, 16, v{YR+k}")
        e(f"v_mul_f32 v{T+k}, v{T+k}, v{YR+k}")
    rnd(T)
    for k in range(8):
        e(f"v_add_f32 v{T+k}, v{T+k}, v{XU+k}")
    rnd(T)
    SU = 16
    for j in range(NSL):
        e(f"s_waitcnt vmcnt({NSL-1-j})")
        for d in range(4):
            s = PR + 4 * j + d
            if j == 0:
                e(f"v_lshlrev_b32 v{SU+2*d}, 16, v{s}")
                e(f"v_and_b32 v{SU+2*d+1}, s35, v{s}")
            else:
                e(f"v_lshlrev_b32 v9, 16, v{s}")
                e(f"v_and_b32 v{s}, s35, v{s}")
                e(f"v_add_f32 v{SU+2*d}, v{SU+2*d}, v9")
                e(f"v_add_f32 v{SU+2*d+1}, v{SU+2*d+1}, v{s}")
    for k in range(8):
        e(f"v_mul_f32 v{SU+k}, v{SU+k}, v{SR_+1}")
    rnd(SU)
    for k in range(8):
        e(f"v_add_f32 v{T+k}, v{T+k}, v{SU+k}")
    for d in range(4):
        e(f"v_cvt_pk_bf16_f32 v{24+d}, v{T+2*d}, v{T+2*d+1}")
    e("s_nop 1")
    e("v_permlane16_swap_b32 v24, v26")
    e("v_permlane16_swap_b32 v25, v27")
    e("buffer_store_dwordx4 v[24:27], v6, s[56:59], s48 offen")
    stamp_end(e, 2, S_W, "r")
    e.label("L_rexit")
    e("s_endpgm")


def prep_kernel(e):
    e("s_cmp_ge_u32 s2, 16")
    e("s_cbranch_scc1 L_pexit")
    stamp_begin(e)
    load_args(e)
    wave_id(e, S_W)
    e("s_mov_b32 s29, s2")
    helper_role(e, 0)
    stamp_end(e, 0, S_W, "p")
    e.label("L_pexit")
    e("s_endpgm")


def main_kernel(e):
    e("s_cmp_ge_u32 s2, 240")
    e("s_cbranch_scc1 L_mexit")
    stamp_begin(e)
    load_args(e)
    wave_id(e, S_W)
    e("s_and_b32 s34, s2, 7")
    e("s_lshr_b32 s35, s2, 3")
    e("s_cmp_lt_u32 s35, 6")
    e("s_cbranch_scc1 L_conv")
    e("s_sub_u32 s35, s35, 6")
    e("s_and_b32 s48, s35, 7")
    e("s_lshr_b32 s49, s35, 3")
    e(f"s_and_b32 s{S_RB}, s34, 1")
    e(f"s_lshl_b32 s50, s48, 1")
    e(f"s_add_u32 s51, s50, s{S_RB}")
    e(f"s_lshl_b32 s{S_RB}, s{S_RB}, 3")
    e(f"s_add_u32 s{S_RB}, s{S_RB}, s48")
    e(f"s_lshr_b32 s{S_SL}, s34, 1")
    e(f"s_mul_i32 s{S_SL}, s{S_SL}, 3")
    e(f"s_add_u32 s{S_SL}, s{S_SL}, s49")
    e("s_mul_i32 s49, s49, 6")
    e(f"s_add_u32 s{S_ROT1}, s51, s49")
    e(f"s_cmp_ge_u32 s{S_ROT1}, 18")
    e("s_cselect_b32 s49, 18, 0")
    e(f"s_sub_u32 s{S_ROT1}, s{S_ROT1}, s49")
    e(f"s_mov_b32 s{S_ROT2}, s48")
    e(f"s_cmp_ge_u32 s{S_W}, 4")
    e("s_cbranch_scc1 L_faux")
    ffn_compute(e)
    e.label("L_faux")
    ffn_aux(e)
    e.label("L_conv")
    e(f"s_mul_i32 s{S_G}, s34, 6")
    e(f"s_add_u32 s{S_G}, s{S_G}, s35")
    e("s_mov_b32 s30, s35")
    conv_role(e)
    e.label("L_mexit")
    e("s_endpgm")


def kd(name, vgpr):
    return f""".section .rodata,"a"
.p2align 6
.amdhsa_kernel {name}
  .amdhsa_next_free_vgpr {vgpr}
  .amdhsa_next_free_sgpr 102
  .amdhsa_accum_offset {(vgpr+3)//4*4}
  .amdhsa_group_segment_fixed_size 0
  .amdhsa_kernarg_size 96
  .amdhsa_user_sgpr_count 2
  .amdhsa_user_sgpr_kernarg_segment_ptr 1
  .amdhsa_system_sgpr_workgroup_id_x 1
.end_amdhsa_kernel
"""


def build():
    ref = open(f"cdna_kernels/{NAME}.s.ref").read().split("\n")
    head = [ln for ln in ref if ln.startswith(";") and "@launch" not in ln and "Override" not in ln and "grid=ceil" not in ln]
    kernels = [("prep_kernel", prep_kernel, 256, 16, 512, 16384),
               (NAME + "_kernel", main_kernel, 256, 240, 512, LDS_BYTES),
               ("reduce_kernel", reduce_kernel, 96, 576, 256, 0)]
    out = "\n".join(head) + "\n"
    for (n, f, vg, g, b, lds) in kernels:
        out += f"; @launch kernel={n} grid=({g},1,1) block=({b},1,1) lds={lds}\n"
    out += '.amdgcn_target "amdgcn-amd-amdhsa--gfx950"\n'
    nbad = 0
    for (n, f, vg, g, b, lds) in kernels:
        e = E()
        f(e)
        for x in check_hazards(e.L):
            print("HAZARD", n, x, file=sys.stderr)
            nbad += 1
        out += f".text\n.globl {n}\n.p2align 8\n.type {n},@function\n{n}:\n" + e.text()
    for (n, f, vg, g, b, lds) in kernels:
        out += kd(n, vg)
    return out, nbad


if __name__ == "__main__":
    path = f"cdna_kernels/{NAME}.s"
    for a in sys.argv[1:]:
        if a.startswith("out="):
            path = a[4:]
        else:
            k, v = a.split("=")
            OPT[k] = int(v)
    txt, nbad = build()
    open(path, "w").write(txt)
    print("wrote", path, len(txt), "bytes; hazards:", nbad)
```

```python
import sys, os
sys.path.insert(0, os.path.dirname(os.path.abspath(__file__)))
from emit import E, vr, sr, srd, check_hazards

NAME = "parallel_sum__ssm_conv_h3__dense_activation_relu__prompt"
XB = 2048 * 576 * 2
WB = 576 * 4608 * 2
NSL = 12
P_OFF = 0
Y_OFF = NSL * XB
CS_OFF = Y_OFF + XB
CS_SZ = 288 * 128
ST_SZ = 2048 * 8
TS_OFF = CS_OFF + CS_SZ + ST_SZ

XBASE = 0
WBASE = 32768
WSLOT = 24576
MISC = WBASE + 5 * WSLOT
LDS_BYTES = 163840
UBASE = 0
UROW = 4608
KBASE = 16 * UROW
NHELP = 28

OPT = dict(stamp=0, noconv=0, nostore=0, plain=0, noffn=0, ffirst=1, pf=1)


def role_of(i, ffirst=1):
    if i >= 256:
        return None
    x, idx = i & 7, i >> 3
    j = idx - 24 if ffirst else idx
    if not 0 <= j < 8:
        return "ffn"
    if j < 4 or x == 0:
        return "conv"
    if x == 1 or j < 6:
        return "cs"
    return "st"


STAMP_GROUPS = {
    "ffn_c": (1, lambda i: role_of(i) == "ffn", slice(0, 4)),
    "ffn_a": (1, lambda i: role_of(i) == "ffn", slice(4, 8)),
    "conv_m": (1, lambda i: role_of(i) == "conv", slice(0, 4)),
    "conv_a": (1, lambda i: role_of(i) == "conv", slice(4, 8)),
    "cs": (1, lambda i: role_of(i) == "cs", slice(0, 8)),
    "st": (1, lambda i: role_of(i) == "st", slice(0, 8)),
    "reduce": (2, lambda i: i < 576, slice(0, 4)),
}
for _x in range(8):
    STAMP_GROUPS[f"ffn_c x{_x}"] = (1, (lambda x: lambda i: role_of(i) == "ffn" and (i & 7) == x)(_x), slice(0, 4))

Q, KK, VV, SH, SK, DD, W1, W2, OUT, DBG, WS = 4, 6, 8, 10, 12, 14, 18, 20, 22, 24, 26


def load_args(e):
    e("s_load_dwordx16 s[4:19], s[0:1], 0")
    e("s_load_dwordx8 s[20:27], s[0:1], 64")


def wave_id(e, s):
    e("v_lshrrev_b32 v1, 6, v0")
    e("v_and_b32 v0, 63, v0")
    e(f"v_readfirstlane_b32 s{s}, v1")


def stamp_begin(e):
    if OPT["stamp"]:
        for k in range(76, 100):
            e(f"s_mov_b32 s{k}, 0")
        e("s_memrealtime s[76:77]")
        e("s_memtime s[78:79]")


def stamp_mid(e, k):
    if OPT["stamp"]:
        e(f"s_memrealtime s[{80+4*k}:{81+4*k}]")
        e(f"s_memtime s[{82+4*k}:{83+4*k}]")


def stamp_end(e, kern, wreg, tag):
    if not OPT["stamp"]:
        return
    e("s_waitcnt vmcnt(0) lgkmcnt(0)")
    e("s_memrealtime s[96:97]")
    e("s_memtime s[98:99]")
    e("s_waitcnt lgkmcnt(0)")
    for k in range(12):
        e(f"v_mov_b32 v{4+k}, s{76+2*k}")
    e(f"s_lshl_b32 s96, s2, 3\ns_add_u32 s96, s96, s{wreg}\ns_lshl_b32 s96, s96, 6")
    e(f"s_add_u32 s96, s96, {TS_OFF + kern * 0x80000}")
    e("v_mov_b32 v2, s96")
    e("s_mov_b64 exec, 1")
    for k in range(3):
        e(f"global_store_dwordx4 v2, v[{4+4*k}:{7+4*k}], s[{WS}:{WS+1}] offset:{16*k}")


S_W, S_RB, S_SL, S_ROT1, S_ROT2 = 28, 29, 30, 31, 33

ACC = 64
XF = 8
WF = 24
VA = 48
VX, VCS, VST, VMSK = 52, 53, 58, 59
NEGM = 54
CSF = [60, 62, 2, 4]


def acc1(t, rt):
    return ACC + 8 * t + 4 * rt


def hreg(u, rt):
    return ACC + 16 * u + 4 * rt


def acc2(s, tile, rt):
    return ACC + 16 * (4 * s + tile) + 8 + 4 * rt


def stg(q):
    return ACC + 16 * (8 + q // 2) + 8 + 4 * (q % 2)


def conv_ops(u):
    b = ACC + 16 * u
    first, second = [], []
    for rt in range(2):
        o = b + 4 * rt
        first += [f"v_cvt_pk_bf16_f32 v{o}, v{o}, v{o+1}", f"v_cvt_pk_bf16_f32 v{o+1}, v{o+2}, v{o+3}",
                  f"v_pk_max_i16 v{o}, v{o}, 0", f"v_pk_max_i16 v{o+1}, v{o+1}, 0"]
        second += [f"v_cvt_pk_bf16_f32 v{o+2}, v{o+8}, v{o+9}", f"v_cvt_pk_bf16_f32 v{o+3}, v{o+10}, v{o+11}",
                   f"v_pk_max_i16 v{o+2}, v{o+2}, 0", f"v_pk_max_i16 v{o+3}, v{o+3}, 0"]
    return first + second


def frag_reads(t):
    b = WF + 4 * (t % 6)
    off = (t >> 2) * 4096
    return (f"ds_read_b64_tr_b16 {vr(b,2)}, v{VA+(t&3)} offset:{off}",
            f"ds_read_b64_tr_b16 {vr(b+2,2)}, v{VA+(t&3)} offset:{off+2048}")


def ffn_stage(e, mf, xnext=None, xneed=None, fill=None, extra=None):
    fill = dict(fill or {})

    def add(slot, ins):
        fill.setdefault(slot, [])
        fill[slot] = fill[slot] + [ins]
    add(2 * 13, "s_sub_u32 s40, s40, 1")
    add(2 * 14, "s_cselect_b32 s41, s43, s42")
    add(2 * 15, "s_cselect_b32 s40, 4, s40")
    add(2 * 16, f"v_add_u32 v{VA}, s41, v{VA}")
    add(2 * 17, f"v_add_u32 v{VA+1}, s41, v{VA+1}")
    add(2 * 18, f"v_add_u32 v{VA+2}, s41, v{VA+2}")
    add(2 * 21, f"v_add_u32 v{VA+3}, s41, v{VA+3}")
    for t in range(24):
        m0, m1 = mf(t)
        tn = (t + 5) % 24
        r0, r1 = frag_reads(tn)
        if t == 0 and xneed:
            e.need(("w", t), "x0")
        else:
            e.need(("w", t))
        e(m0)
        if t == 19:
            e("s_barrier")
        e.ds(r0, ("w", tn))
        if xnext is not None and t in (19, 20):
            p, off = xnext
            i = t - 19
            e.ds(f"ds_read_b128 {vr(XF+8*p+4*i,4)}, v{VX} offset:{off+1024*i}", f"x{i}")
        for ins in fill.get(2 * t, []):
            if isinstance(ins, tuple):
                e.ds(*ins)
            else:
                e(ins)
        if t == 0 and xneed:
            e.need("x1")
        e(m1)
        e.ds(r1, ("w", tn))
        for ins in fill.get(2 * t + 1, []):
            if isinstance(ins, tuple):
                e.ds(*ins)
            else:
                e(ins)
        if extra:
            extra(t)


def g1_mf(p, zero=False):
    def f(t):
        w = WF + 4 * (t % 6)
        out = []
        for rt in range(2):
            a = acc1(t, rt)
            c = "0" if zero else vr(a, 4)
            out.append(f"v_mfma_f32_16x16x32_bf16 {vr(a,4)}, {vr(w,4)}, {vr(XF+8*p+4*rt,4)}, {c}")
        return out
    return f


def g2_mf(s, half):
    def f(t):
        w = WF + 4 * (t % 6)
        u, tile = t >> 2, t & 3
        out = []
        for rt in range(2):
            a = acc2(s, tile, rt)
            c = "0" if (half == 0 and u == 0) else vr(a, 4)
            out.append(f"v_mfma_f32_16x16x32_bf16 {vr(a,4)}, {vr(w,4)}, {vr(hreg(half*6+u,rt),4)}, {c}")
        return out
    return f


def g2_epi(s):
    ops = []
    for cp in range(2):
        for rt in range(2):
            q = rt * 2 + cp
            d = stg(q)
            for i in range(2):
                a = acc2(s, 2 * cp + i, rt)
                ops.append(f"v_cvt_pk_bf16_f32 v{d+2*i}, v{a}, v{a+1}")
                ops.append(f"v_cvt_pk_bf16_f32 v{d+2*i+1}, v{a+2}, v{a+3}")
            if OPT["nostore"]:
                ops.append("s_nop 0")
            else:
                ops.append(f"buffer_store_dwordx4 {vr(d,4)}, v{VST}, s[36:39], s44 offen offset:{q*1024}" + ("" if OPT["plain"] else " sc1"))
    return ops


PST_UPD = ["s_add_u32 s44, s44, 4096", "s_cmp_eq_u32 s44, s46", "s_cselect_b32 s44, s45, s44"]


def ffn_compute(e):
    e.comment("---------------- FFN compute waves ----------------")
    e("s_setprio 1")
    e("v_lshrrev_b32 v1, 4, v0")
    e("v_and_b32 v2, 15, v0")
    e("v_lshrrev_b32 v3, 2, v2")
    e("v_and_b32 v4, 1, v1")
    e("v_lshl_add_u32 v4, v4, 2, v3")
    e("v_lshrrev_b32 v5, 1, v1")
    e("v_lshlrev_b32 v5, 10, v5")
    e("v_lshl_add_u32 v5, v4, 7, v5")
    e("v_and_b32 v6, 3, v2")
    e("v_lshl_add_u32 v5, v6, 3, v5")
    e(f"v_add_u32 v5, {WBASE}, v5")
    e("v_lshrrev_b32 v4, 1, v4")
    for t in range(4):
        e(f"v_xor_b32 v6, {t}, v4")
        e(f"v_lshl_add_u32 v{VA+t}, v6, 5, v5")
    e("v_and_b32 v4, 1, v3")
    e("v_lshlrev_b32 v4, 1, v4")
    e("v_lshrrev_b32 v5, 1, v3")
    e("v_mul_u32_u24 v5, 3, v5")
    e("v_xor_b32 v4, v4, v5")
    e("v_xor_b32 v4, v4, v1")
    e("v_lshlrev_b32 v4, 4, v4")
    e("v_lshl_add_u32 v4, v2, 6, v4")
    e(f"s_lshl_b32 s34, s{S_W}, 11")
    e(f"v_add_u32 v{VX}, s34, v4")
    e(f"v_lshlrev_b32 v{VCS}, 3, v2")
    e(f"v_add_u32 v{VCS}, {MISC}, v{VCS}")
    e(f"s_lshl_b32 s34, s{S_W}, 8")
    e(f"v_add_u32 v7, s34, v{VCS}")
    e(f"v_lshlrev_b32 v{VST}, 4, v0")
    e("v_cmp_gt_u32 vcc, 16, v0")
    e("s_mov_b32 s40, 4")
    e(f"s_mov_b32 s42, {WSLOT}")
    e(f"v_cndmask_b32 v{VMSK}, 0, -1, vcc")
    e(f"s_mov_b32 s43, {-4*WSLOT}")
    e(f"s_lshl_b32 s45, s{S_SL}, 4")
    e(f"s_add_u32 s45, s45, s{S_RB}")
    e("s_lshl_b32 s45, s45, 2")
    e(f"s_add_u32 s45, s45, s{S_W}")
    e("s_mul_i32 s45, s45, 36864")
    e("s_add_u32 s46, s45, 36864")
    e(f"s_lshl_b32 s44, s{S_ROT2}, 12")
    e("s_add_u32 s44, s44, s45")
    e("s_mov_b32 s47, 7")
    e("s_waitcnt lgkmcnt(0)")
    srd(e, 36, WS, NSL * XB, P_OFF)
    e("s_waitcnt vmcnt(0)")
    e("s_barrier")
    stamp_mid(e, 0)
    if OPT["stamp"]:
        e("s_waitcnt lgkmcnt(0)")
    for t in range(5):
        r0, r1 = frag_reads(t)
        e.ds(r0, ("w", t))
        if t < 2:
            e.ds(f"ds_read_b128 {vr(XF+4*t,4)}, v{VX} offset:{1024*t}", f"x{t}")
        e.ds(r1, ("w", t))
    q0 = list(e.q)
    ffn_stage(e, g1_mf(0, zero=True), xnext=(1, 8192), xneed=True)
    assert e.q == q0, (e.q, q0)
    e.label("L_g1")
    ffn_stage(e, g1_mf(1), xnext=(0, 0), xneed=True, fill={2: [f"v_xor_b32 v{VX}, 0x4000, v{VX}"]})
    ffn_stage(e, g1_mf(0), xnext=(1, 8192), xneed=True, fill={46: ["s_sub_u32 s47, s47, 1"]})
    assert e.q == q0
    e("s_cbranch_scc0 L_g1")
    pend = []
    LAG = 3

    def corr(t):
        f = CSF[t % 4]
        e.need(("cs", t))
        for rt in range(2):
            a = acc1(t, rt)
            e(f"v_mfma_f32_16x16x16_bf16 {vr(a,4)}, {vr(f,2)}, {vr(NEGM+2*rt,2)}, {vr(a,4)}")
            for _ in range(2):
                if pend:
                    e(pend.pop(0))

    def extra17(t):
        if t == 1:
            e.need("st")
            for rt in range(2):
                n = NEGM + 2 * rt
                e(f"v_xor_b32 v{n}, 0x80000000, v{n}")
                e(f"v_and_b32 v{n}, v{n}, v{VMSK}")
                e(f"v_lshrrev_b32 v{n+1}, 16, v{n}")
                e(f"v_or_b32 v{n}, v{n}, v{n+1}")
        tc = t - LAG
        if tc >= 0:
            if tc >= 3 and tc % 2 == 1:
                pend.extend(conv_ops((tc - 3) // 2))
            corr(tc)
    fill17 = {}
    fill17[0] = [(f"ds_read_b32 v{NEGM}, v7 offset:3072", "st"), (f"ds_read_b32 v{NEGM+2}, v7 offset:3200", "st")]
    for t in range(24):
        fill17.setdefault(2 * t, [])
        fill17[2 * t] = fill17[2 * t] + [(f"ds_read_b64_tr_b16 {vr(CSF[t%4],2)}, v{VCS} offset:{t*128}", ("cs", t))]
    ffn_stage(e, g1_mf(1), xneed=True, fill=fill17, extra=extra17)
    for tc in range(24 - LAG, 24):
        if tc % 2 == 1:
            pend.extend(conv_ops((tc - 3) // 2))
        corr(tc)
    pend.extend(conv_ops(11))
    done = 192 - len(pend)
    stamp_mid(e, 1)
    while done < 64:
        e(pend.pop(0))
        done += 1
    fills = [{}, {}]
    pr = 0
    rest = len(pend)
    npairs = 43
    for k in range(rest):
        u = (done + k) // 16
        pos = min((k * npairs) // rest, max(0, 4 * u - 1))
        st, t = divmod(pos, 24)
        fills[st].setdefault(2 * t, []).append(pend[k])
    e("s_mov_b32 s47, 3")
    ffn_stage(e, g2_mf(0, 0), fill=fills[0])
    ffn_stage(e, g2_mf(0, 1), fill=fills[1])
    q1 = list(e.q)
    e.label("L_g2")

    def epi_fill(s):
        ops = g2_epi(s)
        fs = [{}, {}]
        for st in range(2):
            o = ops[10 * st:10 * st + 10]
            cv = o[0:4] + o[5:9]
            for k, op in enumerate(cv):
                fs[st][2 * (2 + k)] = [op]
            fs[st][2 * 12] = [o[4]]
            fs[st][2 * 16 + 1] = [o[9]]
        for k, t in enumerate((20, 22, 22)):
            fs[1].setdefault(2 * t + (k == 2), []).append(PST_UPD[k])
        return fs
    for s in (1, 0):
        f, f2 = epi_fill(1 - s)
        if s == 0:
            f2[46] = ["s_sub_u32 s47, s47, 1"]
        ffn_stage(e, g2_mf(s, 0), fill=f)
        ffn_stage(e, g2_mf(s, 1), fill=f2)
    assert e.q == q1
    e("s_cbranch_scc0 L_g2")
    stamp_mid(e, 2)
    e("s_nop 1")
    for op in g2_epi(0):
        e(op)
    e.q = []
    stamp_end(e, 1, S_W, "fc")
    e("s_endpgm")


def ffn_aux(e):
    e.comment("---------------- FFN loader waves ----------------")
    sw = 34
    e(f"s_sub_u32 s{sw}, s{S_W}, 4")
    e("v_lshrrev_b32 v1, 3, v0")
    e("v_and_b32 v2, 7, v0")
    e("v_and_b32 v3, 6, v1")
    e("v_xor_b32 v2, v2, v3")
    e("v_lshlrev_b32 v2, 4, v2")
    e(f"s_and_b32 s35, s{sw}, 1")
    e("s_lshl_b32 s35, s35, 4")
    e(f"s_lshr_b32 s48, s{sw}, 1")
    e("s_lshl_b32 s48, s48, 2")
    e("s_add_u32 s35, s35, s48")
    e("v_lshrrev_b32 v3, 2, v1")
    e("v_and_b32 v4, 3, v1")
    e("v_lshl_add_u32 v3, v3, 3, v4")
    e("v_add_u32 v3, s35, v3")
    e("v_mul_u32_u24 v3, 9216, v3")
    e("v_add_u32 v10, v3, v2")
    e(f"s_lshl_b32 s35, s{sw}, 3")
    e("v_add_u32 v3, s35, v1")
    e("v_mul_u32_u24 v3, 1152, v3")
    e("v_add_u32 v11, v3, v2")
    e("v_lshrrev_b32 v1, 2, v0")
    e("v_lshrrev_b32 v3, 4, v0")
    e("v_and_b32 v4, 1, v3")
    e("v_lshlrev_b32 v4, 1, v4")
    e("v_lshrrev_b32 v5, 1, v3")
    e("v_mul_u32_u24 v5, 3, v5")
    e("v_xor_b32 v4, v4, v5")
    e("v_and_b32 v5, 3, v0")
    e("v_xor_b32 v4, v4, v5")
    e(f"s_lshl_b32 s35, s{sw}, 5")
    e("v_add_u32 v1, s35, v1")
    e("v_mul_u32_u24 v1, 1152, v1")
    e("v_lshl_add_u32 v12, v4, 4, v1")
    e("v_add_u32 v13, 18432, v12")
    e("v_lshlrev_b32 v14, 4, v0")
    e("v_mov_b32 v16, 0")
    e(f"s_mul_i32 s50, s{S_SL}, 768")
    e(f"s_mul_i32 s51, s{S_RB}, 147456")
    e(f"s_mov_b32 s52, s{S_ROT1}")
    e(f"s_lshl_b32 s53, s{sw}, 10")
    e(f"s_add_u32 s53, s53, {WBASE}")
    e(f"s_add_u32 s54, s53, {5*WSLOT}")
    e("s_mov_b32 s55, s53")
    e(f"s_lshl_b32 s56, s{sw}, 11")
    e("s_mov_b32 s57, 0")
    e("s_waitcnt lgkmcnt(0)")
    stamp_mid(e, 0)
    srd(e, 36, W1, WB)
    srd(e, 40, Q, XB)
    srd(e, 44, W2, WB)
    srd(e, 60, WS, CS_SZ + ST_SZ, CS_OFF)
    e("s_branch L_a1i")
    e.label("L_a1")
    e("s_waitcnt vmcnt(16)")
    e("s_barrier")
    e("s_cmp_lg_u32 s57, 17")
    e("s_cbranch_scc1 L_a1i")
    e(f"s_mul_i32 s58, s{S_SL}, 3072")
    e(f"s_lshl_b32 s59, s{sw}, 10")
    e("s_add_u32 s58, s58, s59")
    e(f"v_add_u32 v15, s59, v14")
    e(f"v_add_u32 v15, {MISC}, v15")
    e(f"s_lshl_b32 s59, s{S_RB}, 10")
    e(f"s_add_u32 s59, s59, {CS_SZ}")
    e(f"s_cmp_eq_u32 s{sw}, 3")
    e("s_cselect_b32 s65, s59, s58")
    e("s_waitcnt vmcnt(8)")
    e.label("L_a1p")
    e("v_readfirstlane_b32 s64, v17")
    e("s_nop 0")
    e(f"s_cmp_ge_u32 s64, {NHELP}")
    e("s_cbranch_scc1 L_a1g")
    e("s_sleep 1")
    e(f"global_load_dword v17, v16, s[{DBG}:{DBG+1}] sc1")
    e("s_waitcnt vmcnt(0)")
    e("s_branch L_a1p")
    e.label("L_a1g")
    stamp_mid(e, 2)
    e("buffer_load_dwordx4 v[20:23], v14, s[60:63], s65 offen sc1")
    e.label("L_a1i")
    e("s_mul_i32 s58, s52, 294912")
    e("s_add_u32 s58, s58, s50")
    e("s_lshl_b32 s59, s52, 6")
    e("s_add_u32 s59, s59, s51")
    e("s_mov_b32 m0, s56")
    e("s_add_u32 s52, s52, 1")
    e("buffer_load_dwordx4 v12, s[40:43], s59 offen lds")
    e("s_add_u32 m0, s56, 1024")
    e("s_cmp_eq_u32 s52, 18")
    e("buffer_load_dwordx4 v13, s[40:43], s59 offen lds")
    e("s_cselect_b32 s52, 0, s52")
    for cg in range(6):
        e(f"s_add_u32 m0, s55, {cg*(4096-128)}")
        e("s_nop 0")
        e(f"buffer_load_dwordx4 v10, s[36:39], s58 offen offset:{cg*128} lds")
    e("s_add_u32 s56, s56, 8192")
    e("s_and_b32 s56, s56, 0x7fff")
    e(f"s_add_u32 s55, s55, {WSLOT}")
    e("s_cmp_eq_u32 s55, s54")
    e("s_cselect_b32 s55, s53, s55")
    e("s_add_u32 s57, s57, 1")
    e("s_cmp_lt_u32 s57, 3")
    e("s_cbranch_scc1 L_a1i")
    if OPT["stamp"]:
        e("s_cmp_lg_u32 s57, 3")
        e("s_cbranch_scc1 L_a1s")
        stamp_mid(e, 1)
        e.label("L_a1s")
    e("s_cmp_lg_u32 s57, 16")
    e("s_cbranch_scc1 L_a1f")
    e(f"global_load_dword v17, v16, s[{DBG}:{DBG+1}] sc1")
    e.label("L_a1f")
    e("s_cmp_lt_u32 s57, 18")
    e("s_cbranch_scc1 L_a1")
    e(f"s_mul_i32 s50, s{S_SL}, {384*1152}")
    e(f"s_mov_b32 s52, s{S_ROT2}")
    e("s_mov_b32 s57, 0")
    e.label("L_a2")
    e("s_lshl_b32 s58, s52, 7")
    e("s_add_u32 s58, s58, s50")
    for half in range(2):
        e("s_waitcnt vmcnt(12)")
        if half == 0:
            e("s_cmp_lg_u32 s57, 1")
            e("s_cbranch_scc1 L_a2m")
            e("ds_write_b128 v15, v[20:23]")
            e("s_waitcnt lgkmcnt(0)")
            e.label("L_a2m")
        e("s_barrier")
        for u in range(6):
            e(f"s_add_u32 m0, s55, {u*4096}")
            e("s_nop 0")
            e("buffer_load_dwordx4 v11, s[44:47], s58 offen lds")
            e("s_add_u32 s58, s58, 36864")
        e(f"s_add_u32 s55, s55, {WSLOT}")
        e("s_cmp_eq_u32 s55, s54")
        e("s_cselect_b32 s55, s53, s55")
    e("s_add_u32 s52, s52, 1")
    e("s_cmp_eq_u32 s52, 9")
    e("s_cselect_b32 s52, 0, s52")
    e("s_add_u32 s57, s57, 1")
    e("s_cmp_lt_u32 s57, 9")
    e("s_cbranch_scc1 L_a2")
    e("s_waitcnt vmcnt(12)\ns_barrier\ns_waitcnt vmcnt(6)\ns_barrier\ns_waitcnt vmcnt(0)\ns_barrier")
    stamp_end(e, 1, S_W, "fa")
    e("s_endpgm")


S_G = 29


def code_prefetch(e, first, last, tmp=8):
    if not OPT["pf"]:
        return
    e("s_getpc_b64 s[68:69]")
    lab = f"L_pf_{first}"
    e.label(lab)
    e(f"s_add_u32 s68, s68, {first}-{lab}")
    e("s_addc_u32 s69, s69, 0")
    e(f"v_lshlrev_b32 v{tmp}, 7, v0")
    e(f"s_mov_b32 s70, {last}-{first}")
    for k in range(2):
        e(f"v_min_u32 v{tmp+1}, s70, v{tmp}")
        e(f"v_mov_b32 v{tmp+3}, s69")
        e(f"v_add_co_u32 v{tmp+2}, vcc, s68, v{tmp+1}")
        e("s_nop 1")
        e(f"v_addc_co_u32 v{tmp+3}, vcc, 0, v{tmp+3}, vcc")
        e(f"global_load_dword v{tmp+4}, v[{tmp+2}:{tmp+3}], off")
        if k < 1:
            e(f"v_add_u32 v{tmp}, 8192, v{tmp}")


def conv_role(e):
    e.comment("---------------- conv role ----------------")
    KR, VR_, TR = 16, 60, 92
    e(f"s_cmp_lg_u32 s{S_W}, 7")
    e("s_cbranch_scc1 L_cnp")
    code_prefetch(e, "L_cnp", "L_cs", 200)
    e.label("L_cnp")
    e(f"s_lshl_b32 s34, s{S_W}, 5")
    e("v_lshrrev_b32 v1, 1, v0")
    e("v_add_u32 v1, s34, v1")
    e("v_and_b32 v2, 1, v0")
    e(f"s_lshl_b32 s35, s{S_G}, 5")
    e("v_mul_u32_u24 v3, 9216, v1")
    e("v_lshlrev_b32 v4, 4, v2")
    e("v_add3_u32 v3, v3, v4, s35")
    e("v_subrev_u32 v4, 3456, v3")
    e("v_cmp_eq_u32 vcc, 0, v1")
    e("v_bfrev_b32 v5, 1")
    e("v_lshlrev_b32 v6, 6, v2")
    e("v_cndmask_b32 v4, v4, v5, vcc")
    e(f"s_lshl_b32 s48, s{S_G}, 7")
    e("s_movk_i32 s49, 4608")
    e("s_waitcnt lgkmcnt(0)")
    srd(e, 36, KK, XB)
    srd(e, 40, VV, XB)
    srd(e, 44, SH, 576 * 8)
    srd(e, 52, SK, XB)
    srd(e, 56, WS, XB, Y_OFF)
    loads = []
    for j in range(3):
        loads.append(f"buffer_load_dwordx4 {vr(KR+4*j,4)}, v4, s[36:39], 0 offen offset:{j*1152}")
    for j in range(8):
        so = "0" if j < 4 else "s49"
        loads.append(f"buffer_load_dwordx4 {vr(KR+4*(3+j),4)}, v3, s[36:39], {so} offen offset:{(j%4)*1152}")
    for j in range(8):
        so = "0" if j < 4 else "s49"
        loads.append(f"buffer_load_dwordx4 {vr(VR_+4*j,4)}, v3, s[40:43], {so} offen offset:{(j%4)*1152}")
    main = loads[3:]
    for a in range(4):
        if a < 3:
            e(f"s_cmp_lg_u32 s30, {a}")
            e(f"s_cbranch_scc1 L_cv{a+1}")
        st = a * 4
        for ld in main[st:] + main[:st]:
            e(ld)
        if a < 3:
            e("s_branch L_cvd")
            e.label(f"L_cv{a+1}")
    e.label("L_cvd")
    for ld in loads[:3]:
        e(ld)
    for i in range(4):
        e(f"buffer_load_dwordx4 {vr(TR+4*i,4)}, v6, s[44:47], s48 offen offset:{16*i}")
    e("v_sub_u32 v7, 255, v1")
    e("v_lshlrev_b32 v7, 4, v7")
    e(f"v_mul_u32_u24 v8, {8*UROW}, v2")
    e("v_add_u32 v7, v7, v8")
    e(f"s_lshl_b32 s34, s{S_W}, 6")
    e("v_add_u32 v8, s34, v0")
    e("v_lshrrev_b32 v9, 5, v8")
    e("v_and_b32 v8, 31, v8")
    e(f"v_mul_u32_u24 v9, {UROW}, v9")
    e("v_lshl_add_u32 v8, v8, 4, v9")
    e("v_mov_b32 v12, 0\nv_mov_b32 v13, 0\nv_mov_b32 v14, 0\nv_mov_b32 v15, 0")
    e("ds_write_b128 v8, v[12:15] offset:4096")
    e(f"s_and_b32 s34, s{S_W}, 3")
    e(f"s_lshl_b32 s50, s{S_G}, 2")
    e("s_add_u32 s50, s50, s34")
    e("s_lshl_b32 s51, s50, 14")
    e(f"s_cmp_ge_u32 s{S_W}, 4")
    e("s_cbranch_scc1 L_caux1")
    CM, DM, FX, FR = 240, 244, 248, 200
    e("s_lshl_b32 s62, s50, 3")
    e(f"s_load_dwordx2 s[64:65], s[{DD}:{DD+1}], s62")
    e("v_and_b32 v9, 15, v0")
    e("v_lshrrev_b32 v10, 4, v0")
    e("v_lshl_add_u32 v11, v10, 3, v9")
    e("s_mov_b32 s62, 0xffff")
    e("s_mov_b32 s63, 0xffff0000")
    e("v_mov_b32 v12, s62\nv_mov_b32 v13, s63")
    for dd in range(4):
        e(f"v_cmp_le_u32 vcc, {15-2*dd}, v11")
        e(f"v_cmp_le_u32 s[66:67], {14-2*dd}, v11")
        e(f"v_mov_b32 v{FX+dd}, 0")
        e(f"v_cndmask_b32 v14, 0, v12, vcc")
        e(f"v_cndmask_b32 v15, 0, v13, s[66:67]")
        e(f"v_cmp_eq_u32 vcc, {15-2*dd}, v11")
        e(f"v_cmp_eq_u32 s[66:67], {14-2*dd}, v11")
        e(f"v_or_b32 v{CM+dd}, v14, v15")
        e(f"v_cndmask_b32 v14, 0, v12, vcc")
        e(f"v_cndmask_b32 v15, 0, v13, s[66:67]")
        e(f"v_or_b32 v{DM+dd}, v14, v15")
    e("s_cmp_lg_u32 s50, 0")
    e("s_cbranch_scc1 L_cnf")
    for j in range(8):
        e(f"v_add_u32 v12, {j-15}, v11")
        e("v_cmp_gt_i32 vcc, 0, v12")
        e("v_lshlrev_b32 v12, 1, v12")
        e("s_nop 0")
        e("v_cndmask_b32 v12, v12, v5, vcc")
        e(f"buffer_load_ushort v{FR+j}, v12, s[52:55], 0 offen")
    e("s_waitcnt vmcnt(0)")
    for dd in range(4):
        e(f"v_lshl_or_b32 v{FX+dd}, v{FR+2*dd+1}, 16, v{FR+2*dd}")
    e.label("L_cnf")
    e("s_waitcnt vmcnt(0)")
    e("s_branch L_ckv")
    e.label("L_caux1")
    KV = 240
    e("s_mov_b32 s62, 53687092")
    e("s_mov_b32 s63, 214748365")
    e("s_mov_b32 s64, 429496730")
    for i in range(5):
        e(f"v_add_u32 v9, {64*i}, v0")
        e("v_mul_hi_u32 v10, v9, s62")
        e("v_mul_u32_u24 v11, 80, v10")
        e("v_sub_u32 v9, v9, v11")
        e("v_mul_hi_u32 v11, v9, s63")
        e("v_mul_u32_u24 v12, 20, v11")
        e("v_sub_u32 v9, v9, v12")
        e("v_mul_hi_u32 v12, v9, s64")
        e("v_mul_u32_u24 v13, 10, v12")
        e("v_sub_u32 v9, v9, v13")
        e("v_lshl_add_u32 v10, v10, 1, v12")
        e("v_lshlrev_b32 v10, 8, v10")
        e("v_lshl_add_u32 v10, v9, 3, v10")
        e("v_add3_u32 v10, v10, v11, -15")
        e("v_lshlrev_b32 v10, 1, v10")
        e(f"v_add_u32 v{KV+i}, s51, v10")
    e("s_mul_i32 s60, s34, 20480")
    e(f"s_add_u32 s60, s60, {KBASE}")

    def chunk(qq):
        for i in range(5):
            e(f"s_add_u32 m0, s60, {qq*5120+i*1024}")
            e("s_nop 0")
            e(f"buffer_load_dwordx4 v{KV+i}, s[52:55], 0 offen lds")
            e(f"v_add_u32 v{KV+i}, {128 if qq < 3 else 4096-384}, v{KV+i}")
    e("s_waitcnt vmcnt(0)")
    chunk(0)
    chunk(1)
    e("v_lshlrev_b32 v9, 7, v0")
    e("s_add_u32 s61, s51, 8192")
    e("buffer_load_dword v246, v9, s[52:55], s51 offen")
    e("buffer_load_dword v247, v9, s[52:55], s61 offen")
    e.label("L_ckv")
    stamp_mid(e, 0)
    KU, VU, OU, TF, PK = 108, 130, 146, 162, 172
    e("s_mov_b32 s35, 0xffff0000")
    for d in range(4):
        for c in range(2):
            for tp in range(2):
                src = TR + 4 * d + 2 * c + tp
                e(f"v_lshlrev_b32 v{TF+4*tp+c}, 16, v{src}")
                e(f"v_and_b32 v{TF+4*tp+2+c}, s35, v{src}")
        for j in range(11):
            e(f"v_lshlrev_b32 v{KU+2*j}, 16, v{KR+4*j+d}")
            e(f"v_and_b32 v{KU+2*j+1}, s35, v{KR+4*j+d}")
        for j in range(8):
            e(f"v_lshlrev_b32 v{VU+2*j}, 16, v{VR_+4*j+d}")
            e(f"v_and_b32 v{VU+2*j+1}, s35, v{VR_+4*j+d}")
        for j in range(8):
            e(f"v_pk_mul_f32 {vr(OU+2*j,2)}, {vr(KU+2*j,2)}, {vr(TF+6,2)}")
        for tap in (2, 1, 0):
            for j in range(8):
                e(f"v_pk_fma_f32 {vr(OU+2*j,2)}, {vr(KU+2*(j+3-tap),2)}, {vr(TF+2*tap,2)}, {vr(OU+2*j,2)}")
        for j in range(8):
            e(f"v_pk_mul_f32 {vr(OU+2*j,2)}, {vr(OU+2*j,2)}, {vr(VU+2*j,2)}")
        for c in range(2):
            pk = PK + 8 * (d & 1) + 4 * c
            for dd in range(4):
                e(f"v_cvt_pk_bf16_f32 v{pk+dd}, v{OU+2*(7-2*dd)+c}, v{OU+2*(6-2*dd)+c}")
            e(f"ds_write_b128 v7, {vr(pk,4)} offset:{(2*d+c)*UROW}")
    e("s_waitcnt vmcnt(7) lgkmcnt(0)")
    e("s_barrier")
    stamp_mid(e, 1)
    e(f"s_cmp_lt_u32 s{S_W}, 4")
    e("s_cbranch_scc1 L_cmf")
    chunk(2)
    chunk(3)
    e("s_mov_b32 s61, 0")
    e.label("L_ca2")
    for qq in range(4):
        e("s_waitcnt vmcnt(10)")
        e("s_barrier")
        chunk(qq)
    e("s_add_u32 s61, s61, 1")
    e("s_cmp_lt_u32 s61, 3")
    e("s_cbranch_scc1 L_ca2")
    e("s_waitcnt vmcnt(10)\ns_barrier\ns_waitcnt vmcnt(5)\ns_barrier\ns_waitcnt vmcnt(0)\ns_barrier")
    stamp_end(e, 1, S_W, "ca")
    e("s_endpgm")
    e.label("L_cmf")
    e("s_setprio 1")
    AF, BF, AC, SV, P01, DI = 16, 80, 144, 176, 208, 12
    VKA, VUB, VY = 2, 3, 6
    e("v_and_b32 v9, 15, v0")
    e("v_lshrrev_b32 v10, 4, v0")
    e("v_and_b32 v11, 3, v9")
    e("v_mul_u32_u24 v11, 320, v11")
    e("v_and_b32 v12, 12, v9")
    e("v_lshl_add_u32 v12, v10, 3, v12")
    e("v_lshl_add_u32 v11, v12, 1, v11")
    e(f"s_mul_i32 s60, s{S_W}, 20480")
    e(f"s_add_u32 s60, s60, {KBASE}")
    e(f"v_add_u32 v{VKA}, s60, v11")
    e(f"s_mul_i32 s60, s{S_W}, {4*UROW}")
    e("v_lshlrev_b32 v11, 5, v9")
    e("v_sub_u32 v11, s60, v11")
    e(f"v_lshl_add_u32 v{VUB}, v10, 4, v11")
    e(f"v_add_u32 v{VUB}, 480, v{VUB}")

    def reads(rho, nxt):
        p = rho & 1
        qq, rp = rho >> 1, rho & 1
        out = []
        for b in range(8):
            off = qq * 5120 + (b >> 1) * 1280 + (b & 1) * 160 + rp * 64
            out.append(f"ds_read_b64 {vr(AF+32*p+4*b,2)}, v{VKA} offset:{off}")
            out.append(f"ds_read_b64 {vr(AF+32*p+4*b+2,2)}, v{VKA} offset:{off+8}")
            out.append(f"ds_read_b128 {vr(BF+32*p+4*b,4)}, v{VUB} offset:{(7-b)*512+rho*64+(UROW if nxt else 0)}")
        return out
    for r in reads(0, False):
        e(r)
    e(f"v_mul_u32_u24 v{VY}, {2*36*1024}, v10")
    e(f"v_lshl_add_u32 v{VY}, v9, 4, v{VY}")
    e(f"s_lshl_b32 s51, s{S_G}, 10")
    e(f"s_lshl_b32 s60, s{S_W}, 8")
    e("s_add_u32 s51, s51, s60")
    e("s_mov_b32 s61, 0")
    e.label("L_cm")
    e("s_pack_ll_b32_b16 s62, s64, s64")
    for dd in range(4):
        e(f"v_and_b32 v{DI+dd}, s62, v{DM+dd}")
    e("s_lshr_b64 s[64:65], s[64:65], 16")
    for rho in range(8):
        p = rho & 1
        e("s_waitcnt lgkmcnt(0)")
        if p == 1:
            e("s_barrier")
        rd = reads((rho + 1) % 8, rho == 7)
        if rho == 0:
            for g in range(8):
                c = AC + 4 * g
                e(f"v_mfma_f32_16x16x32_bf16 {vr(c,4)}, {vr(BF+4*g,4)}, {vr(DI,4)}, 0")
                if g < 4:
                    e(f"v_and_or_b32 v{AF+g}, v{AF+g}, v{CM+g}, v{FX+g}")
                else:
                    e(f"v_mov_b32 v{FX+g-4}, 0")
        for b in range(8):
            for g in range(8 - b):
                c = AC + 4 * (b + g)
                e(f"v_mfma_f32_16x16x32_bf16 {vr(c,4)}, {vr(BF+32*p+4*g,4)}, {vr(AF+32*p+4*b,4)}, {vr(c,4)}")
                if rd:
                    e(rd.pop(0))
        assert not rd
    e(f"v_add_u32 v{VUB}, {UROW}, v{VUB}")
    e("s_add_u32 s61, s61, 1")
    e("s_cmp_eq_u32 s61, 4")
    e("s_cbranch_scc1 L_cfin")
    e("s_cmp_eq_u32 s61, 2")
    e("s_cbranch_scc1 L_cpk")
    for k in range(32):
        e(f"v_mov_b32 v{SV+k}, v{AC+k}")
    e("s_branch L_cm")
    e.label("L_cpk")
    for k in range(32):
        e(f"v_cvt_pk_bf16_f32 v{P01+k}, v{SV+k}, v{AC+k}")
    e("s_branch L_cm")
    e.label("L_cfin")
    stamp_mid(e, 2)
    e("s_waitcnt lgkmcnt(0)")
    for t in range(8):
        for rp in range(2):
            o = AF + 8 * t + 4 * rp
            for i in range(2):
                k = 4 * t + 2 * rp + i
                e(f"v_mov_b32 v{o+2*i}, v{P01+k}")
                e(f"v_cvt_pk_bf16_f32 v{o+2*i+1}, v{SV+k}, v{AC+k}")
            e(f"buffer_store_dwordx4 {vr(o,4)}, v{VY}, s[56:59], s51 offen sc1")
            e(f"s_add_u32 s51, s51, {36*1024 if rp == 0 else 7*36*1024}")
    stamp_end(e, 1, S_W, "cm")
    e("s_endpgm")


def helper_signal(e):
    e("s_waitcnt vmcnt(0)")
    e("s_barrier")
    e(f"s_cmp_lg_u32 s{S_W}, 0")
    e("s_cbranch_scc1 L_hend")
    e("v_mov_b32 v2, 0\nv_mov_b32 v3, 1")
    e("s_mov_b64 exec, 1")
    e(f"global_atomic_add v2, v3, s[{DBG}:{DBG+1}] sc1")
    e.label("L_hend")
    stamp_end(e, 1, S_W, "h")
    e("s_endpgm")


def cs_role(e):
    e.comment("---------------- column sums of w1 ----------------")
    XR = 16
    e(f"s_lshl_b32 s34, s{S_W}, 6")
    e("v_add_u32 v4, s34, v0")
    e("s_mov_b32 s35, 119304648")
    e("v_mul_hi_u32 v5, v4, s35")
    e("v_mul_u32_u24 v6, 36, v5")
    e("v_sub_u32 v6, v4, v6")
    e("v_mul_u32_u24 v7, 9216, v5")
    e("v_lshl_add_u32 v7, v6, 4, v7")
    e("v_cmp_le_u32 vcc, 504, v4")
    e("v_bfrev_b32 v8, 1")
    e("s_mul_i32 s48, s29, 576")
    e("v_cndmask_b32 v7, v7, v8, vcc")
    e("s_mov_b32 s35, 0xffff0000")
    e("s_waitcnt lgkmcnt(0)")
    srd(e, 40, W1, WB)
    srd(e, 44, WS, CS_SZ + ST_SZ, CS_OFF)
    NB = 7
    for j in range(NB):
        e(f"buffer_load_dwordx4 {vr(XR+4*j,4)}, v7, s[40:43], s48 offen")
        e(f"s_add_u32 s48, s48, {14*9216}")
    CA = 96
    for d in range(8):
        e(f"v_mov_b32 v{CA+d}, 0")
    e("s_mov_b32 s50, 0")
    e.label("L_h1")
    for j in range(NB):
        e(f"s_waitcnt vmcnt({NB-1})")
        for d in range(4):
            s = XR + 4 * j + d
            e(f"v_lshlrev_b32 v{104+2*d}, 16, v{s}")
            e(f"v_and_b32 v{105+2*d}, s35, v{s}")
        e(f"buffer_load_dwordx4 {vr(XR+4*j,4)}, v7, s[40:43], s48 offen")
        e(f"s_add_u32 s48, s48, {14*9216}")
        for d in range(4):
            e(f"v_pk_add_f32 {vr(CA+2*d,2)}, {vr(CA+2*d,2)}, {vr(104+2*d,2)}")
    e("s_add_u32 s50, s50, 1")
    e("s_cmp_lt_u32 s50, 6")
    e("s_cbranch_scc1 L_h1")
    e("v_lshlrev_b32 v9, 5, v4")
    e(f"ds_write_b128 v9, {vr(CA,4)}")
    e(f"ds_write_b128 v9, {vr(CA+4,4)} offset:16")
    e("s_waitcnt vmcnt(0) lgkmcnt(0)")
    e("s_barrier")
    e("v_lshlrev_b32 v9, 3, v4")
    for j in range(14):
        e(f"ds_read_b64 {vr(XR+2*j,2)}, v9 offset:{j*1152}")
    e("v_lshrrev_b32 v10, 3, v4")
    e("v_and_b32 v11, 7, v4")
    e("v_lshlrev_b32 v10, 7, v10")
    e("v_lshl_add_u32 v10, v11, 2, v10")
    e("v_cmp_le_u32 vcc, 144, v4")
    e("s_mul_i32 s49, s29, 2304")
    e("s_waitcnt lgkmcnt(0)")
    e("v_cndmask_b32 v10, v10, v8, vcc")
    for j in range(1, 14):
        e(f"v_pk_add_f32 {vr(XR,2)}, {vr(XR,2)}, {vr(XR+2*j,2)}")
    for k in range(3):
        e(f"v_cvt_pk_bf16_f32 v{50+k}, v{XR}, v{XR+1}")
        e(f"v_lshlrev_b32 v12, 16, v{50+k}")
        e(f"v_and_b32 v13, s35, v{50+k}")
        e(f"v_sub_f32 v{XR}, v{XR}, v12")
        e(f"v_sub_f32 v{XR+1}, v{XR+1}, v13")
        e(f"buffer_store_dword v{50+k}, v10, s[44:47], s49 offen offset:{32*k} sc1")
    e("v_mov_b32 v53, 0")
    e("buffer_store_dword v53, v10, s[44:47], s49 offen offset:96 sc1")
    e("s_branch L_hsig")


def st_role(e):
    e.comment("---------------- LayerNorm row statistics ----------------")
    XR, XU = 16, 96
    e("v_lshrrev_b32 v1, 2, v0")
    e("v_mul_u32_u24 v2, 1152, v1")
    e("v_and_b32 v3, 3, v0")
    e("v_lshl_add_u32 v2, v3, 4, v2")
    e("v_lshlrev_b32 v1, 3, v1")
    e("v_cmp_ne_u32 vcc, 0, v3")
    e("v_bfrev_b32 v8, 1")
    e("s_mov_b32 s35, 0xffff0000")
    e("v_cndmask_b32 v1, v1, v8, vcc")
    e("s_waitcnt lgkmcnt(0)")
    srd(e, 36, Q, XB)
    srd(e, 44, WS, CS_SZ + ST_SZ, CS_OFF)
    e.label("L_h2")
    e("s_mul_i32 s48, s29, 18432")
    for j in range(18):
        e(f"buffer_load_dwordx4 {vr(XR+4*j,4)}, v2, s[36:39], s48 offen offset:{64*j}")
    e("v_mov_b32 v10, 0\nv_mov_b32 v11, 0")
    for j in range(18):
        e(f"s_waitcnt vmcnt({17-j})")
        for d in range(4):
            s, u = XR + 4 * j + d, XU + 8 * j + 2 * d
            e(f"v_lshlrev_b32 v{u}, 16, v{s}")
            e(f"v_and_b32 v{u+1}, s35, v{s}")
        for d in range(4):
            u = XU + 8 * j + 2 * d
            e(f"v_pk_add_f32 v[10:11], v[10:11], {vr(u,2)}")
    e("v_add_f32 v9, v10, v11")
    e("s_nop 1")
    e("v_add_f32_dpp v9, v9, v9 quad_perm:[1,0,3,2] row_mask:0xf bank_mask:0xf")
    e("s_nop 1")
    e("v_add_f32_dpp v9, v9, v9 quad_perm:[2,3,0,1] row_mask:0xf bank_mask:0xf")
    e("v_mul_f32 v9, 0x3ae38e39, v9")
    e("v_sub_f32 v14, 0, v9\nv_sub_f32 v15, 0, v9")
    e("v_mov_b32 v10, 0\nv_mov_b32 v11, 0\nv_mov_b32 v12, 0\nv_mov_b32 v13, 0")
    for j in range(0, 144, 4):
        e(f"v_pk_add_f32 {vr(XU+j,2)}, {vr(XU+j,2)}, v[14:15]")
        e(f"v_pk_add_f32 {vr(XU+j+2,2)}, {vr(XU+j+2,2)}, v[14:15]")
        e(f"v_pk_fma_f32 v[10:11], {vr(XU+j,2)}, {vr(XU+j,2)}, v[10:11]")
        e(f"v_pk_fma_f32 v[12:13], {vr(XU+j+2,2)}, {vr(XU+j+2,2)}, v[12:13]")
    e("v_pk_add_f32 v[10:11], v[10:11], v[12:13]")
    e("s_nop 0")
    e("v_add_f32 v10, v10, v11")
    e("s_nop 1")
    e("v_add_f32_dpp v10, v10, v10 quad_perm:[1,0,3,2] row_mask:0xf bank_mask:0xf")
    e("s_nop 1")
    e("v_add_f32_dpp v10, v10, v10 quad_perm:[2,3,0,1] row_mask:0xf bank_mask:0xf")
    e("v_mul_f32 v10, 0x3ae38e39, v10")
    e("v_cvt_pk_bf16_f32 v10, v10, v9")
    e("v_and_b32 v12, s35, v10")
    e("v_lshlrev_b32 v10, 16, v10")
    e("v_add_f32 v10, 0x3727c5ac, v10")
    e("v_cvt_pk_bf16_f32 v10, v10, v10")
    e("v_lshlrev_b32 v10, 16, v10")
    e("v_sqrt_f32 v10, v10")
    e("s_lshl_b32 s49, s29, 7")
    e("v_cvt_pk_bf16_f32 v10, v10, v10")
    e("v_lshlrev_b32 v10, 16, v10")
    e("v_rcp_f32 v13, v10")
    e(f"s_add_u32 s49, s49, {CS_SZ}")
    e("s_add_u32 s29, s29, 48")
    e("buffer_store_dwordx2 v[12:13], v1, s[44:47], s49 offen sc1")
    e("s_cmp_lt_u32 s29, s30")
    e("s_cbranch_scc1 L_h2")
    e.label("L_hsig")
    helper_signal(e)


def reduce_kernel(e):
    e("s_cmp_ge_u32 s2, 288")
    e("s_cbranch_scc1 L_rexit")
    stamp_begin(e)
    load_args(e)
    wave_id(e, S_W)
    e("v_and_b32 v1, 15, v0")
    e("v_lshrrev_b32 v2, 4, v0")
    e("v_lshlrev_b32 v3, 4, v0")
    e("s_lshl_b32 s29, s2, 2")
    e(f"s_add_u32 s29, s29, s{S_W}")
    e("s_mul_hi_u32 s31, s29, 238609295")
    e("s_mul_i32 s33, s31, 18")
    e("s_sub_u32 s33, s29, s33")
    e("s_lshr_b32 s30, s29, 1")
    e("s_lshl_b32 s30, s30, 12")
    e("s_and_b32 s34, s29, 1")
    e("s_lshl_b32 s34, s34, 10")
    e("s_add_u32 s30, s30, s34")
    e("s_lshl_b32 s49, s29, 11")
    e("v_mul_u32_u24 v4, 1152, v1")
    e("v_and_b32 v6, 1, v2")
    e("v_lshlrev_b32 v6, 5, v6")
    e("v_lshrrev_b32 v7, 1, v2")
    e("v_lshl_add_u32 v6, v7, 4, v6")
    e("v_add_u32 v6, v6, v4")
    e("v_lshlrev_b32 v8, 3, v1")
    e("s_mul_i32 s48, s31, 36864")
    e("s_lshl_b32 s50, s33, 6")
    e("s_add_u32 s48, s48, s50")
    e("s_add_u32 s51, s48, 18432")
    e("s_lshl_b32 s50, s31, 8")
    e(f"s_add_u32 s50, s50, {CS_SZ}")
    e("s_waitcnt lgkmcnt(0)")
    srd(e, 36, WS, NSL * XB, P_OFF)
    srd(e, 40, Q, XB)
    srd(e, 44, WS, XB, Y_OFF)
    srd(e, 52, WS, CS_SZ + ST_SZ, CS_OFF)
    srd(e, 56, OUT, XB)
    PR, YR, XR, SR_ = 64, 24, 16, 12
    for j in range(NSL):
        for rt in range(2):
            e(f"buffer_load_dwordx4 {vr(PR+8*j+4*rt,4)}, v3, s[36:39], s30 offen offset:{2048*rt}")
        e(f"s_add_u32 s30, s30, {XB}")
    for rt in range(2):
        e(f"buffer_load_dwordx2 {vr(SR_+2*rt,2)}, v8, s[52:55], s50 offen offset:{128*rt}")
        e(f"buffer_load_dwordx4 {vr(YR+4*rt,4)}, v3, s[44:47], s49 offen offset:{1024*rt}")
        e(f"buffer_load_dwordx4 {vr(XR+4*rt,4)}, v6, s[40:43], s{48 if rt == 0 else 51} offen")
    e("s_mov_b32 s35, 0xffff0000")
    SU, T = 32, 48
    for j in range(NSL):
        e(f"s_waitcnt vmcnt({2*(NSL-1-j)+6})")
        for d in range(8):
            s = PR + 8 * j + d
            dst = SU + 2 * d if j == 0 else T + 2 * d
            e(f"v_lshlrev_b32 v{dst}, 16, v{s}")
            e(f"v_and_b32 v{dst+1}, s35, v{s}")
        if j:
            for d in range(8):
                e(f"v_pk_add_f32 {vr(SU+2*d,2)}, {vr(SU+2*d,2)}, {vr(T+2*d,2)}")
    e("s_waitcnt vmcnt(0)")
    for rt in range(2):
        x = XR + 4 * rt
        e(f"v_permlane16_swap_b32 v{x}, v{x+2}")
        e(f"v_permlane16_swap_b32 v{x+1}, v{x+3}")
    for rt in range(2):
        m, rs = SR_ + 2 * rt, SR_ + 2 * rt + 1
        for d in range(4):
            x = XR + 4 * rt + d
            y = YR + 4 * (d >> 1) + 2 * rt + (d & 1)
            su = SU + 8 * rt + 2 * d
            e(f"v_lshlrev_b32 v{T}, 16, v{x}")
            e(f"v_and_b32 v{T+1}, s35, v{x}")
            e(f"v_lshlrev_b32 v{T+2}, 16, v{y}")
            e(f"v_and_b32 v{T+3}, s35, v{y}")
            for k in range(2):
                e(f"v_sub_f32 v{T+4+k}, v{T+k}, v{m}")
                e(f"v_fmac_f32 v{su+k}, v{T+4+k}, v{T+2+k}")
                e(f"v_fmac_f32 v{T+k}, v{su+k}, v{rs}")
            e(f"v_cvt_pk_bf16_f32 v{PR+4*rt+d}, v{T}, v{T+1}")
        o = PR + 4 * rt
        e("s_nop 1")
        e(f"v_permlane16_swap_b32 v{o}, v{o+2}")
        e(f"v_permlane16_swap_b32 v{o+1}, v{o+3}")
        e(f"buffer_store_dwordx4 {vr(o,4)}, v6, s[56:59], s{48 if rt == 0 else 51} offen")
    stamp_end(e, 2, S_W, "r")
    e.label("L_rexit")
    e("s_endpgm")


def main_kernel(e):
    e("s_cmp_ge_u32 s2, 256")
    e("s_cbranch_scc1 L_mexit")
    stamp_begin(e)
    load_args(e)
    wave_id(e, S_W)
    e("s_and_b32 s34, s2, 7")
    e("s_lshr_b32 s35, s2, 3")
    if OPT["ffirst"]:
        e("s_cmp_ge_u32 s35, 24")
        e("s_cbranch_scc1 L_other")
    else:
        e("s_cmp_lt_u32 s35, 8")
        e("s_cbranch_scc1 L_other")
        e("s_sub_u32 s35, s35, 8")
    if OPT["noffn"]:
        e("s_endpgm")
    e("s_and_b32 s48, s35, 7")
    e("s_lshr_b32 s49, s35, 3")
    e(f"s_and_b32 s{S_RB}, s34, 1")
    e(f"s_lshl_b32 s50, s48, 1")
    e(f"s_add_u32 s51, s50, s{S_RB}")
    e(f"s_lshl_b32 s{S_RB}, s{S_RB}, 3")
    e(f"s_add_u32 s{S_RB}, s{S_RB}, s48")
    e(f"s_lshr_b32 s{S_SL}, s34, 1")
    e(f"s_mul_i32 s{S_SL}, s{S_SL}, 3")
    e(f"s_add_u32 s{S_SL}, s{S_SL}, s49")
    e("s_mul_i32 s49, s49, 6")
    e(f"s_add_u32 s{S_ROT1}, s51, s49")
    e(f"s_cmp_ge_u32 s{S_ROT1}, 18")
    e("s_cselect_b32 s49, 18, 0")
    e(f"s_sub_u32 s{S_ROT1}, s{S_ROT1}, s49")
    e(f"s_mov_b32 s{S_ROT2}, s48")
    e(f"s_cmp_lt_u32 s{S_W}, 4")
    e("s_cbranch_scc1 L_fcomp")
    ffn_aux(e)
    e.label("L_fcomp")
    e(f"s_cmp_lg_u32 s{S_W}, 0")
    e("s_cbranch_scc1 L_fnp")
    code_prefetch(e, "L_fnp", "L_other", 200)
    e.label("L_fnp")
    ffn_compute(e)
    e.label("L_other")
    e("s_and_b32 s35, s35, 7")
    e("s_and_b32 s30, s35, 3")
    e("s_cmp_lt_u32 s35, 4")
    e("s_cselect_b32 s48, s34, 8")
    e("s_cbranch_scc1 L_conv")
    e("s_cmp_eq_u32 s34, 0")
    e("s_cbranch_scc1 L_conv")
    e("s_mov_b32 s29, s30")
    e("s_cmp_eq_u32 s34, 1")
    e("s_cbranch_scc1 L_cs")
    e("s_lshl_b32 s29, s34, 1")
    e("s_add_u32 s29, s29, s30")
    e("s_cmp_lt_u32 s30, 2")
    e("s_cbranch_scc1 L_cs")
    e("s_and_b32 s29, s34, 6")
    e("s_add_u32 s29, s29, s30")
    e("s_sub_u32 s29, s29, 4")
    e(f"s_mul_i32 s48, s{S_W}, 6")
    e("s_add_u32 s29, s29, s48")
    e("s_and_b32 s30, s34, 1")
    e("s_lshl_b32 s30, s30, 6")
    e("s_add_u32 s29, s29, s30")
    e("s_add_u32 s30, s30, 64")
    e("s_branch L_st")
    e.label("L_conv")
    if OPT["noconv"]:
        e("s_endpgm")
    e(f"s_lshl_b32 s{S_G}, s48, 2")
    e(f"s_add_u32 s{S_G}, s{S_G}, s30")
    conv_role(e)
    e.label("L_cs")
    cs_role(e)
    e.label("L_st")
    st_role(e)
    e.label("L_mexit")
    e("s_endpgm")


def kd(name, vgpr):
    return f""".section .rodata,"a"
.p2align 6
.amdhsa_kernel {name}
  .amdhsa_next_free_vgpr {vgpr}
  .amdhsa_next_free_sgpr 102
  .amdhsa_accum_offset {(vgpr+3)//4*4}
  .amdhsa_group_segment_fixed_size 0
  .amdhsa_kernarg_size 96
  .amdhsa_user_sgpr_count 2
  .amdhsa_user_sgpr_kernarg_segment_ptr 1
  .amdhsa_system_sgpr_workgroup_id_x 1
.end_amdhsa_kernel
"""


def build():
    ref = open(f"cdna_kernels/{NAME}.s.ref").read().split("\n")
    head = [ln for ln in ref if ln.startswith(";") and "@launch" not in ln and "Override" not in ln and "grid=ceil" not in ln]
    kernels = [(NAME + "_kernel", main_kernel, 256, 256, 512, LDS_BYTES),
               ("reduce_kernel", reduce_kernel, 160, 288, 256, 0)]
    out = "\n".join(head) + "\n"
    for (n, f, vg, g, b, lds) in kernels:
        out += f"; @launch kernel={n} grid=({g},1,1) block=({b},1,1) lds={lds}\n"
    out += '.amdgcn_target "amdgcn-amd-amdhsa--gfx950"\n'
    nbad = 0
    for (n, f, vg, g, b, lds) in kernels:
        e = E()
        f(e)
        for x in check_hazards(e.L):
            print("HAZARD", n, x, file=sys.stderr)
            nbad += 1
        out += f".text\n.globl {n}\n.p2align 8\n.type {n},@function\n{n}:\n" + e.text()
    for (n, f, vg, g, b, lds) in kernels:
        out += kd(n, vg)
    return out, nbad


if __name__ == "__main__":
    path = f"cdna_kernels/{NAME}.s"
    for a in sys.argv[1:]:
        if a.startswith("out="):
            path = a[4:]
        else:
            k, v = a.split("=")
            OPT[k] = int(v)
    txt, nbad = build()
    open(path, "w").write(txt)
    print("wrote", path, len(txt), "bytes; hazards:", nbad)
```

```python
from lib import *
def kern(a1, a2, same, ld=None, ld2=None, KB=48):
    L=[]; A=L.append
    A("s_load_dwordx4 s[4:7], s[0:1], 0")
    A("s_load_dwordx2 s[8:9], s[0:1], 16")
    A("s_waitcnt lgkmcnt(0)")
    A("s_mov_b32 s24, s4"); A("s_mov_b32 s25, s5"); A("s_mov_b32 s26, 0x8000000"); A("s_mov_b32 s27, 0x20000")
    A(f"s_mul_i32 s14, s2, {KB*1024}")
    A("v_lshlrev_b32 v1, 4, v0")
    A("v_mov_b32 v4, v0"); A("v_mov_b32 v5, v0"); A("v_mov_b32 v6, v0"); A("v_mov_b32 v7, v0")
    A("s_memrealtime s[20:21]")
    if a1 is not None:
        A("s_mov_b32 s15, s14")
        for j in range(KB//4):
            A(f"buffer_store_dwordx4 v[4:7], v1, s[24:27], s15 offen {a1}"); A("s_add_u32 s15, s15, 4096")
    A("s_waitcnt vmcnt(0)"); A("s_barrier")
    A("s_memrealtime s[22:23]")
    A("s_sleep 32")
    if ld is not None:
        A("s_memrealtime s[20:21]")
        A("s_mov_b32 s15, s14")
        for j in range(KB//4):
            A(f"buffer_load_dwordx4 v[8:11], v1, s[24:27], s15 offen {ld}"); A("s_add_u32 s15, s15, 4096")
        A("s_waitcnt vmcnt(0)")
        A("s_memrealtime s[22:23]")
    A("s_sleep 32")
    A("s_barrier")
    A("s_memrealtime s[32:33]")
    if a2 == "wb":
        A("s_cmp_ge_u32 s2, 8"); A("s_cbranch_scc1 L_nw")
        A("buffer_wbl2 sc1")
        A("L_nw:")
    elif a2 is not None:
        A("s_mov_b32 s15, s14" if same else "s_add_u32 s15, s14, 0x2000000")
        for j in range(KB//4):
            A(f"buffer_store_dwordx4 v[4:7], v1, s[24:27], s15 offen {a2}"); A("s_add_u32 s15, s15, 4096")
    A("s_waitcnt vmcnt(0)"); A("s_barrier")
    A("s_memrealtime s[34:35]")
    if ld2 is not None:
        A("s_add_u32 s15, s14, 0x2000000")
        for j in range(KB//4):
            A(f"buffer_load_dwordx4 v[8:11], v1, s[24:27], s15 offen {ld2}"); A("s_add_u32 s15, s15, 4096")
        A("s_waitcnt vmcnt(0)")
    A("s_sleep 127"); A("s_sleep 127")
    A("s_memrealtime s[36:37]")
    A("s_waitcnt lgkmcnt(0)")
    A("s_sub_u32 s22, s22, s20"); A("s_sub_u32 s34, s34, s32")
    A("v_mov_b32 v4, s22"); A("v_mov_b32 v5, s34"); A("v_mov_b32 v6, s36")
    A(f"s_lshl_b32 s3, s2, 4"); A("v_mov_b32 v8, s3")
    A("v_cmp_eq_u32 vcc, 0, v0"); A("s_and_saveexec_b64 s[38:39], vcc"); A("s_cbranch_execz L_e")
    A("global_store_dwordx3 v8, v[4:6], s[8:9] sc1")
    A("L_e:")
    return "\n".join(L)
nxt = """
s_memrealtime s[20:21]
s_load_dwordx2 s[8:9], s[0:1], 16
s_waitcnt lgkmcnt(0)
v_mov_b32 v4, s20
v_mov_b32 v8, 4092
global_store_dword v8, v4, s[8:9]
"""
rd = """
s_load_dwordx2 s[4:5], s[0:1], 0
s_lshl_b32 s3, s2, 18
v_lshlrev_b32 v1, 4, v0
s_waitcnt lgkmcnt(0)
s_mov_b32 s6, 0x20000000
s_mov_b32 s7, 0x20000
s_mov_b32 s8, 0
L_r:
buffer_load_dwordx4 v[4:7], v1, s[4:7], s3 offen
s_add_u32 s3, s3, 4096
s_add_u32 s8, s8, 1
s_cmp_lt_u32 s8, 64
s_cbranch_scc1 L_r
s_waitcnt vmcnt(0)
"""
if on_gpu:
    W = DeviceBuffer(128<<20); ts = DeviceBuffer(4096); big=DeviceBuffer(512<<20)
for a1,a2,same,ld,ld2 in (("","sc1",0,"sc1",None),("","sc1",0,"sc1 nt",None),("","sc1",0,"nt",None),("","sc1",0,"sc1","sc1"),("","sc1",0,"sc1 nt","sc1"),("",None,0,"sc1 nt",None),("","sc1",0,"sc0 sc1 nt","sc1"),("","sc1",1,"sc1 nt",None),("nt","sc1",0,"sc1 nt","sc1"),("","sc1",0,"sc0 sc1",None)):
    co = build("dt", [("dt_kernel", kern(a1,a2,same,ld,ld2), 16, 16, 256), ("nx_kernel", nxt, 16, 16, 64), ("rd_kernel", rd, 16, 16, 256)])
    if not on_gpu: continue
    m = Mod(co, ["dt_kernel","nx_kernel","rd_kernel"])
    res=[]
    for it in range(7):
        m.launch("rd_kernel", 2048, 256, [big.ptr,0,0,0]); sync()
        m.launch("dt_kernel", 192, 256, [W.ptr,0,ts.ptr,0], lds=140*1024)
        m.launch("nx_kernel", 1, 64, [W.ptr,0,ts.ptr,0]); sync()
        hh = ts.to_numpy(np.uint32,(256,4)).astype(np.int64); h=hh[:192]
        res.append([h[:,0].mean()*.01,h[:,1].mean()*.01,h[:,1].max()*.01,(hh[255,3]-h[:,2].max())*.01])
    r=np.median(np.array(res),axis=0)
    print(f"first={a1!r:8} second={a2!r:10} same={same} ld={ld!r} ld2={ld2!r}: t1 {r[0]:.2f} t2 mean {r[1]:.2f} max {r[2]:.2f} endgap {r[3]:.2f}",flush=True)
    m.k.unload()
```

```python
from lib import *
def kern(mf, op, KB=144):
    L=[]; A=L.append
    A("s_load_dwordx4 s[4:7], s[0:1], 0")
    A("s_load_dwordx2 s[8:9], s[0:1], 16")
    A("v_lshrrev_b32 v1, 6, v0"); A("s_nop 0"); A("v_readfirstlane_b32 s13, v1")
    A("s_waitcnt lgkmcnt(0)")
    A("s_mov_b32 s24, s4"); A("s_mov_b32 s25, s5"); A("s_mov_b32 s26, 0x8000000"); A("s_mov_b32 s27, 0x20000")
    A("s_mov_b32 s28, s6"); A("s_mov_b32 s29, s7"); A("s_mov_b32 s30, 0x600000"); A("s_mov_b32 s31, 0x20000")
    A("v_and_b32 v1, 255, v0"); A("v_lshlrev_b32 v1, 4, v1")
    A("s_lshl_b32 s3, s2, 12")
    for j in range(16):
        A(f"buffer_load_dwordx4 v[{16+4*j}:{19+4*j}], v1, s[28:31], s3 offen"); A("s_add_u32 s3, s3, 0x10000")
    for j in range(128): A(f"v_mov_b32 v{96+j}, 0")
    A(f"s_mul_i32 s15, s2, {KB*1024}")
    A("s_waitcnt vmcnt(0)"); A("s_barrier")
    A("s_cmp_ge_u32 s13, 4"); A("s_cbranch_scc1 L_m")
    if mf:
        A("s_mov_b32 s19, 0")
        A("L_l:")
        for j in range(64):
            a=16+4*(j%8); b=48+4*((j//8)%8); c=96+4*(j%32)
            A(f"v_mfma_f32_16x16x32_bf16 v[{c}:{c+3}], v[{a}:{a+3}], v[{b}:{b+3}], v[{c}:{c+3}]")
        A("s_add_u32 s19, s19, 1"); A(f"s_cmp_lt_u32 s19, 30"); A("s_cbranch_scc1 L_l")
    A("s_endpgm")
    A("L_m:")
    A("s_sleep 50")
    A("s_memrealtime s[20:21]"); A("s_memtime s[22:23]")
    for j in range(KB//4):
        o = op if op!="rw" else ("r" if j%2 else "w")
        if o=="r": A(f"buffer_load_dwordx4 v[{100+4*(j%16)}:{103+4*(j%16)}], v1, s[24:27], s15 offen sc1")
        else: A(f"buffer_store_dwordx4 v[16:19], v1, s[24:27], s15 offen sc1")
        A("s_add_u32 s15, s15, 4096")
    A("s_waitcnt vmcnt(0)")
    A("s_memrealtime s[34:35]"); A("s_memtime s[36:37]")
    A("s_waitcnt lgkmcnt(0)")
    A("s_sub_u32 s36, s36, s22")
    A("v_mov_b32 v4, s20"); A("v_mov_b32 v5, s34"); A("v_mov_b32 v6, s36")
    A(f"s_lshl_b32 s3, s2, 2"); A("s_add_u32 s3, s3, s13"); A("s_sub_u32 s3, s3, 4"); A("s_lshl_b32 s3, s3, 4"); A("v_mov_b32 v8, s3")
    A("s_mov_b64 exec, 1")
    A("global_store_dwordx3 v8, v[4:6], s[8:9]")
    return "\n".join(L)
if on_gpu:
    rng=np.random.default_rng(0)
    def bf(x): return (x.astype(np.float32).view(np.uint32)>>16).astype(np.uint16)
    R=DeviceBuffer.from_numpy(bf(rng.standard_normal(4<<20)*0.05))
    W = DeviceBuffer(128<<20); ts = DeviceBuffer(16384)
for op in ("w","r","rw"):
  for mf in (0,1):
    co = build("lk", [("lk_kernel", kern(mf,op), 256, 256, 512), ("fl_kernel", kern(0,"w").replace("L_","M_"), 256, 256, 512)])
    if not on_gpu: continue
    m = Mod(co, ["lk_kernel","fl_kernel"])
    res=[]
    for it in range(7):
        m.launch("fl_kernel", 256, 512, [W.ptr,R.ptr,ts.ptr,0], lds=140*1024); sync()
        m.launch("lk_kernel", 256, 512, [W.ptr,R.ptr,ts.ptr,0], lds=140*1024); sync()
        h = ts.to_numpy(np.uint32,(1024,4)).astype(np.int64)
        d=h[:,1]-h[:,0]
        res.append([(h[:,1].max()-h[:,0].min())*.01, d.mean()*.01, (h[:,2]/d).mean()*100])
    r=np.median(np.array(res),axis=0)
    print(f"op={op} mfma={mf}: span {r[0]:.2f} mean {r[1]:.2f} clk {r[2]:.0f}",flush=True)
    m.k.unload()
```

```python
from lib import *
def kern(mf, op, KB=96, pre=0, gap=50):
    L=[]; A=L.append
    A("s_load_dwordx4 s[4:7], s[0:1], 0")
    A("s_load_dwordx2 s[8:9], s[0:1], 16")
    A("v_lshrrev_b32 v1, 6, v0"); A("s_nop 0"); A("v_readfirstlane_b32 s13, v1")
    A("s_waitcnt lgkmcnt(0)")
    A("s_mov_b32 s24, s4"); A("s_mov_b32 s25, s5"); A("s_mov_b32 s26, 0x8000000"); A("s_mov_b32 s27, 0x20000")
    A("s_mov_b32 s28, s6"); A("s_mov_b32 s29, s7"); A("s_mov_b32 s30, 0x600000"); A("s_mov_b32 s31, 0x20000")
    A("v_and_b32 v1, 255, v0"); A("v_lshlrev_b32 v1, 4, v1")
    A("s_and_b32 s3, s2, 7"); A("s_lshl_b32 s3, s3, 12")
    for j in range(16):
        A(f"buffer_load_dwordx4 v[{16+4*j}:{19+4*j}], v1, s[28:31], s3 offen"); A("s_add_u32 s3, s3, 0x10000")
    for j in range(128): A(f"v_mov_b32 v{96+j}, 0")
    A(f"s_mul_i32 s15, s2, {KB*1024}")
    if pre:
        A(f"s_mul_i32 s16, s2, {pre*1024}"); A("s_add_u32 s16, s16, 0x4000000"); A("v_lshlrev_b32 v2, 4, v0")
        for j in range(pre//8):
            A("buffer_load_dwordx4 v[8:11], v2, s[24:27], s16 offen"); A("s_add_u32 s16, s16, 8192")
    A("s_waitcnt vmcnt(0)"); A("s_barrier")
    A("s_cmp_ge_u32 s13, 4"); A("s_cbranch_scc1 L_m")
    if mf:
        A("s_mov_b32 s19, 0")
        A("L_l:")
        for j in range(64):
            a=16+4*(j%8); b=48+4*((j//8)%8); c=96+4*(j%32)
            A(f"v_mfma_f32_16x16x32_bf16 v[{c}:{c+3}], v[{a}:{a+3}], v[{b}:{b+3}], v[{c}:{c+3}]")
        A("s_add_u32 s19, s19, 1"); A(f"s_cmp_lt_u32 s19, 30"); A("s_cbranch_scc1 L_l")
    A("s_endpgm")
    A("L_m:")
    A(f"s_sleep {gap}"); A(f"s_sleep {gap}")
    A("s_memrealtime s[20:21]"); A("s_memtime s[22:23]")
    for j in range(KB//4):
        o = op if op!="rw" else ("r" if j%2 else "w")
        if o=="r": A(f"buffer_load_dwordx4 v[{100+4*(j%16)}:{103+4*(j%16)}], v1, s[24:27], s15 offen sc1")
        else: A(f"buffer_store_dwordx4 v[16:19], v1, s[24:27], s15 offen sc1")
        A("s_add_u32 s15, s15, 4096")
    A("s_waitcnt vmcnt(0)")
    A("s_memrealtime s[34:35]"); A("s_memtime s[36:37]")
    A("s_waitcnt lgkmcnt(0)")
    A("s_sub_u32 s36, s36, s22")
    A("v_mov_b32 v4, s20"); A("v_mov_b32 v5, s34"); A("v_mov_b32 v6, s36")
    A(f"s_lshl_b32 s3, s2, 2"); A("s_add_u32 s3, s3, s13"); A("s_sub_u32 s3, s3, 4"); A("s_lshl_b32 s3, s3, 4"); A("v_mov_b32 v8, s3")
    A("s_mov_b64 exec, 1")
    A("global_store_dwordx3 v8, v[4:6], s[8:9]")
    return "\n".join(L)
if on_gpu:
    rng=np.random.default_rng(0)
    def bf(x): return (x.astype(np.float32).view(np.uint32)>>16).astype(np.uint16)
    R=DeviceBuffer.from_numpy(bf(rng.standard_normal(4<<20)*0.05))
    W = DeviceBuffer(128<<20); ts = DeviceBuffer(16384)
rd = """
s_load_dwordx2 s[4:5], s[0:1], 0
s_lshl_b32 s3, s2, 18
v_lshlrev_b32 v1, 4, v0
s_waitcnt lgkmcnt(0)
s_mov_b32 s6, 0x20000000
s_mov_b32 s7, 0x20000
s_mov_b32 s8, 0
L_r:
buffer_load_dwordx4 v[4:7], v1, s[4:7], s3 offen
s_add_u32 s3, s3, 4096
s_add_u32 s8, s8, 1
s_cmp_lt_u32 s8, 64
s_cbranch_scc1 L_r
s_waitcnt vmcnt(0)
"""
if on_gpu:
    big=DeviceBuffer(512<<20)
    print(subprocess.run("rocm-smi --showbus 2>/dev/null | grep GPU", shell=True, capture_output=True, text=True).stdout)
for mf,pre,gap in ((0,0,25),(1,0,5),(1,0,25),(1,0,100),(1,16,100),(1,32,100),(1,64,100),(1,128,100),(0,32,100)):
    co = build("lk", [("lk_kernel", kern(mf,"r",pre=pre,gap=gap), 256, 256, 512), ("rd_kernel", rd, 16, 16, 256)])
    if not on_gpu: continue
    m = Mod(co, ["lk_kernel","rd_kernel"])
    res=[]
    for it in range(40):
        m.launch("rd_kernel", 2048, 256, [big.ptr,0,0,0]); sync()
        m.launch("lk_kernel", 256, 512, [W.ptr,R.ptr,ts.ptr,0], lds=140*1024); sync()
        h = ts.to_numpy(np.uint32,(1024,4)).astype(np.int64)
        res.append((h[:,1]-h[:,0]).mean()*.01)
    print(f"mfma={mf} pre={pre} gap={gap}: "+" ".join(f"{x:.1f}" for x in res),flush=True)
    m.k.unload()
```
